```python
import torch

def _softmax(x, axis=-1):
    return torch.softmax(x, dim=axis)
def _gelu(x):
    return torch.nn.functional.gelu(x, approximate="tanh")
def _silu(x):
    return torch.nn.functional.silu(x)
def _sigmoid(x):
    return torch.sigmoid(x)
def _layernorm(x, axis=-1, eps=1e-5):
    m = x.mean(dim=axis, keepdim=True)
    v = x.var(dim=axis, keepdim=True, unbiased=False)
    return (x - m) / torch.sqrt(v + eps)
def _scatter_add(tgt, idx, src, axis=0):
    return tgt.clone().index_add_(axis, idx, src)
def _segment_sum(src, seg, n):
    out = torch.zeros((n,) + src.shape[1:], dtype=src.dtype)
    return out.index_add_(0, seg, src)
def _pad(x, pw):
    flat = tuple(v for pair in reversed(pw) for v in pair)
    return torch.nn.functional.pad(x, flat)

kernel_name = 'interleave_layers__mha_block__glu_gated_swiglu__prompt'

def setup_inputs():

    _w = (lambda a: (lambda t: t.to(torch.bfloat16) if t.is_floating_point() else t)(torch.as_tensor(a)))
    def _A_setup():
        B, S, D, H = 1, 2048, 448, 16
        return {
            "x": _w((lambda *s: torch.randn(*s, dtype=torch.bfloat16) * 0.05)(B, S, D)),
            "wqkv": _w((lambda *s: torch.randn(*s, dtype=torch.bfloat16) * 0.05)(D, 3 * D)),
            "wo": _w((lambda *s: torch.randn(*s, dtype=torch.bfloat16) * 0.05)(D, D)),
        }
    _A_in = _A_setup()

    def _B_setup():
        B, S, D, F = 1, 2048, 448, 1792
        return {
            "x": _w((lambda *s: torch.randn(*s, dtype=torch.bfloat16) * 0.05)(B, S, D)),
            "w1": _w((lambda *s: torch.randn(*s, dtype=torch.bfloat16) * 0.4)(D, F) * (2.0 / D) ** 0.5),
            "w3": _w((lambda *s: torch.randn(*s, dtype=torch.bfloat16) * 0.4)(D, F) * (2.0 / D) ** 0.5),
            "w2": _w((lambda *s: torch.randn(*s, dtype=torch.bfloat16) * 0.4)(F, D) * (2.0 / F) ** 0.5),
        }
    _B_in = _B_setup()

    return {
        "A_x": _A_in["x"],
        "A_wqkv": _A_in["wqkv"],
        "A_wo": _A_in["wo"],
        "B_x": _B_in["x"],
        "B_w1": _B_in["w1"],
        "B_w3": _B_in["w3"],
        "B_w2": _B_in["w2"],
    }

def reference(A_x, A_wqkv, A_wo, B_x, B_w1, B_w3, B_w2):
    def _A_ref(x, wqkv, wo):
        B, S, D = x.shape
        H = 16
        Dh = D // H
        qkv = (lambda x, *d: x.permute(*d))((x @ wqkv).reshape(B, S, 3, H, Dh), 2, 0, 3, 1, 4)
        q, k, v = qkv[0], qkv[1], qkv[2]
        scores = torch.einsum("bhqd,bhkd->bhqk", q, k) * (Dh ** -0.5)
        p = _softmax(scores, axis=-1)
        o = torch.einsum("bhqk,bhkd->bhqd", p, v)
        return (lambda x, *d: x.permute(*d))(o, 0, 2, 1, 3).reshape(B, S, D) @ wo

    def _B_ref(x, w1, w3, w2):
        gate = torch.einsum("bsd,df->bsf", x, w1)
        up = torch.einsum("bsd,df->bsf", x, w3)
        h = _silu(gate) * up
        out = torch.einsum("bsf,fd->bsd", h, w2)
        return out

    x = A_x
    x = x + _A_ref(_layernorm(x, axis=-1), A_wqkv, A_wo)
    x = x + _B_ref(_layernorm(x, axis=-1), B_w1, B_w3, B_w2)
    x = x + _A_ref(_layernorm(x, axis=-1), A_wqkv, A_wo)
    x = x + _B_ref(_layernorm(x, axis=-1), B_w1, B_w3, B_w2)
    return x
```

```python
import re

TRANS = ('v_exp_f32', 'v_log_f32', 'v_rcp_f32', 'v_rsq_f32', 'v_sqrt_f32', 'v_sin_f32',
         'v_cos_f32', 'v_rcp_iflag_f32', 'v_exp_f16', 'v_log_f16', 'v_rcp_f16', 'v_rsq_f16',
         'v_sqrt_f16')

_reg_re = re.compile(r'^(-|\|)?(abs\()?([vsa])(\d+)\)?\|?$')
_rng_re = re.compile(r'^(-|\|)?(abs\()?([vsa])\[(\d+):(\d+)\]\)?\|?$')


def parse_operand(tok):
    tok = tok.strip()
    m = _reg_re.match(tok)
    if m:
        return [(m.group(3), int(m.group(4)))]
    m = _rng_re.match(tok)
    if m:
        return [(m.group(3), i) for i in range(int(m.group(4)), int(m.group(5)) + 1)]
    if tok in ('vcc',):
        return [('s', 106), ('s', 107)]
    if tok == 'vcc_lo':
        return [('s', 106)]
    if tok == 'vcc_hi':
        return [('s', 107)]
    if tok == 'm0':
        return [('s', 124)]
    if tok == 'exec':
        return [('s', 126), ('s', 127)]
    if tok == 'exec_lo':
        return [('s', 126)]
    if tok == 'exec_hi':
        return [('s', 127)]
    return []


def _base(mn):
    return re.sub(r'_(e32|e64|dpp|sdwa)$', '', mn)


def mfma_passes(mn):
    if '32x32x16' in mn or '32x32x8' in mn:
        return 8
    if '16x16x32' in mn or '16x16x16' in mn:
        return 4
    if '4x4x4' in mn:
        return 2
    raise ValueError('unknown mfma ' + mn)


class Inst:
    __slots__ = ('text', 'mn', 'ops', 'mods', 'reads', 'writes', 'cls', 'is_label', 'label',
                 'target', 'comment')

    def __init__(self, text):
        self.text = text
        self.is_label = False
        self.label = None
        self.target = None
        self.reads = set()
        self.writes = set()
        self.cls = None
        t = text.split(';')[0].strip()
        if t.endswith(':'):
            self.is_label = True
            self.label = t[:-1]
            self.mn = ''
            self.ops = []
            return
        parts = t.split(None, 1)
        self.mn = parts[0]
        rest = parts[1] if len(parts) > 1 else ''
        toks = [x.strip() for x in rest.split(',')] if rest else []
        ops = []
        mods = []
        for i, tk in enumerate(toks):
            sub = tk.split()
            if not sub:
                continue
            ops.append(sub[0])
            mods.extend(sub[1:])
        self.ops = ops
        self.mods = mods
        self._classify()

    def _classify(self):
        mn = self.mn
        ops = self.ops
        regs = [parse_operand(o) for o in ops]
        R = set()
        W = set()
        if mn.startswith('v_mfma') or mn.startswith('v_smfmac'):
            self.cls = 'mfma'
            W.update(regs[0])
            for r in regs[1:]:
                R.update(r)
        elif mn.startswith('v_'):
            self.cls = 'valu'
            if mn.startswith('v_cmpx'):
                W.update([('s', 126), ('s', 127)])
                for r in regs:
                    R.update(r)
            elif mn.startswith('v_cmp'):
                W.update(regs[0])
                for r in regs[1:]:
                    R.update(r)
            elif mn.startswith('v_permlane') and 'swap' in mn:
                for r in regs:
                    R.update(r)
                    W.update(r)
            elif mn.startswith('v_swap'):
                for r in regs:
                    R.update(r)
                    W.update(r)
            else:
                W.update(regs[0])
                if ('_co_' in mn) and len(regs) >= 2:
                    W.update(regs[1])
                    for r in regs[2:]:
                        R.update(r)
                    if mn.startswith('v_addc') or mn.startswith('v_subb'):
                        pass
                else:
                    for r in regs[1:]:
                        R.update(r)
                if mn.startswith('v_fmac') or mn.startswith('v_pk_fmac') or mn.startswith('v_dot2c') \
                        or mn.startswith('v_mac') or mn.startswith('v_writelane'):
                    R.update(regs[0])
                if mn.startswith('v_cndmask') and len(ops) == 3:
                    R.update([('s', 106), ('s', 107)])
                if mn.startswith('v_div_fmas'):
                    R.update([('s', 106), ('s', 107)])
        elif mn.startswith('ds_'):
            self.cls = 'ds'
            if mn.startswith('ds_read') or mn.startswith('ds_bpermute') or mn.startswith('ds_permute') \
                    or mn.startswith('ds_swizzle'):
                W.update(regs[0])
                for r in regs[1:]:
                    R.update(r)
            else:
                for r in regs:
                    R.update(r)
        elif mn.startswith('buffer_') or mn.startswith('global_') or mn.startswith('flat_') \
                or mn.startswith('scratch_'):
            self.cls = 'vmem'
            is_load = '_load' in mn
            lds = 'lds' in self.mods or '_lds_' in mn
            if is_load and not lds:
                W.update(regs[0])
                for r in regs[1:]:
                    R.update(r)
            else:
                for r in regs:
                    R.update(r)
            if lds:
                R.add(('s', 124))
        elif mn.startswith('s_load') or mn.startswith('s_buffer_load') or mn in ('s_memtime', 's_memrealtime'):
            self.cls = 'smem'
            W.update(regs[0])
            for r in regs[1:]:
                R.update(r)
        elif mn in ('s_waitcnt', 's_barrier', 's_nop', 's_endpgm', 's_setprio', 's_sleep', 's_sethalt'):
            self.cls = 'ctl'
        elif mn.startswith('s_cbranch') or mn == 's_branch':
            self.cls = 'branch'
            self.target = ops[0]
            if 'vcc' in mn:
                R.update([('s', 106), ('s', 107)])
            if 'exec' in mn:
                R.update([('s', 126), ('s', 127)])
        elif mn.startswith('s_'):
            self.cls = 'salu'
            if mn.startswith('s_cmp') or mn.startswith('s_bitcmp'):
                for r in regs:
                    R.update(r)
            elif 'saveexec' in mn:
                W.update(regs[0])
                W.update([('s', 126), ('s', 127)])
                R.update([('s', 126), ('s', 127)])
                for r in regs[1:]:
                    R.update(r)
            else:
                W.update(regs[0])
                for r in regs[1:]:
                    R.update(r)
                if mn in ('s_addk_i32', 's_mulk_i32', 's_cmovk_i32'):
                    R.update(regs[0])
        else:
            raise ValueError('cannot classify: ' + self.text)
        self.reads = R
        self.writes = W


def _is_v(r):
    return r[0] in ('v', 'a')


class Kernel:
    def __init__(self, name):
        self.name = name
        self.items = []
        self.vgpr_hi = 0
        self.sgpr_hi = 0
        self.agpr_hi = 0
        self.lds = 0
        self.accum_offset = None

    def emit(self, text):
        for line in text.split('\n'):
            line = line.strip()
            if not line or line.startswith(';'):
                continue
            self.items.append(Inst(line))

    __call__ = emit

    def label(self, name):
        self.items.append(Inst(name + ':'))

    @staticmethod
    def _merge_q(a, b):
        n = max(len(a), len(b))
        out = []
        for i in range(1, n + 1):
            s = set()
            if i <= len(a):
                s |= a[-i]
            if i <= len(b):
                s |= b[-i]
            out.append(frozenset(s))
        out.reverse()
        return tuple(out)

    def _sim_block(self, insts, vmq, lgq):
        vmq = list(vmq)
        lgq = list(lgq)
        out = []
        for ins in insts:
            if ins.is_label:
                out.append(ins)
                continue
            if ins.mn == 's_waitcnt':
                txt = ins.text
                m = re.search(r'vmcnt\((\d+)\)', txt)
                if m:
                    n = int(m.group(1))
                    vmq = vmq[len(vmq) - n:] if n < len(vmq) else vmq
                    if n == 0:
                        vmq = []
                m = re.search(r'lgkmcnt\((\d+)\)', txt)
                if m:
                    n = int(m.group(1))
                    lgq = lgq[len(lgq) - n:] if n < len(lgq) else lgq
                    if n == 0:
                        lgq = []
                out.append(ins)
                continue
            touched = ins.reads | ins.writes
            need_vm = None
            need_lg = None
            for depth in range(len(vmq)):
                ent = vmq[len(vmq) - 1 - depth]
                if ent & touched:
                    if ins.cls == 'vmem' and not (ent & ins.reads):
                        continue
                    need_vm = depth
                    break
            for depth in range(len(lgq)):
                ent = lgq[len(lgq) - 1 - depth]
                if ent & touched:
                    if ins.cls == 'ds' and not (ent & ins.reads) and ('smem', 0) not in ent:
                        continue
                    need_lg = depth
                    break
            if need_lg is not None:
                if any(('smem', 0) in e for e in lgq):
                    need_lg = 0
            if need_vm is not None or need_lg is not None:
                parts = []
                if need_vm is not None:
                    need_vm = min(need_vm, 63)
                    parts.append('vmcnt(%d)' % need_vm)
                    vmq = vmq[len(vmq) - need_vm:] if need_vm > 0 else []
                if need_lg is not None:
                    need_lg = min(need_lg, 15)
                    parts.append('lgkmcnt(%d)' % need_lg)
                    lgq = lgq[len(lgq) - need_lg:] if need_lg > 0 else []
                out.append(Inst('s_waitcnt ' + ' '.join(parts)))
            out.append(ins)
            if ins.cls == 'vmem':
                lds = 'lds' in ins.mods or '_lds_' in ins.mn
                vmq.append(frozenset(ins.writes) if not lds else frozenset())
                if ins.mn.startswith('flat_'):
                    raise ValueError('flat not supported')
            elif ins.cls == 'ds':
                lgq.append(frozenset(ins.writes))
            elif ins.cls == 'smem':
                lgq.append(frozenset(set(ins.writes) | {('smem', 0)}))
                if 'x' in ins.mn:
                    lgq.append(frozenset(set(ins.writes) | {('smem', 0)}))
            elif ins.mn == 's_endpgm':
                vmq = []
                lgq = []
        return out, tuple(frozenset(x) for x in vmq), tuple(frozenset(x) for x in lgq)

    def _waitcnt_pass(self):
        items = self.items
        blocks = []
        cur = []
        for ins in items:
            if ins.is_label and cur:
                blocks.append(cur)
                cur = []
            cur.append(ins)
            if (not ins.is_label) and ins.cls == 'branch':
                blocks.append(cur)
                cur = []
            elif (not ins.is_label) and ins.mn == 's_endpgm':
                blocks.append(cur)
                cur = []
        if cur:
            blocks.append(cur)
        label2blk = {}
        for i, b in enumerate(blocks):
            for ins in b:
                if ins.is_label:
                    label2blk[ins.label] = i
                else:
                    break
        succs = []
        for i, b in enumerate(blocks):
            s = []
            last = b[-1]
            if (not last.is_label) and last.cls == 'branch':
                s.append(label2blk[last.target])
                if last.mn != 's_branch':
                    if i + 1 < len(blocks):
                        s.append(i + 1)
            elif (not last.is_label) and last.mn == 's_endpgm':
                pass
            elif i + 1 < len(blocks):
                s.append(i + 1)
            succs.append(s)
        instate = [None] * len(blocks)
        instate[0] = ((), ())
        work = [0]
        outs = [None] * len(blocks)
        iters = 0
        while work:
            iters += 1
            if iters > 50 * len(blocks) + 100:
                raise RuntimeError('waitcnt pass did not converge')
            bi = work.pop(0)
            vmq, lgq = instate[bi]
            new, vo, lo = self._sim_block(blocks[bi], vmq, lgq)
            outs[bi] = new
            for s in succs[bi]:
                if instate[s] is None:
                    instate[s] = (vo, lo)
                    work.append(s)
                else:
                    mv = self._merge_q(instate[s][0], vo)
                    ml = self._merge_q(instate[s][1], lo)
                    if (mv, ml) != instate[s]:
                        instate[s] = (mv, ml)
                        if s not in work:
                            work.append(s)
        res = []
        for i, b in enumerate(blocks):
            if outs[i] is None:
                res.extend(b)
            else:
                res.extend(outs[i])
        self.items = res

    def _hazard_pass(self):
        out = []
        hist = []

        def need_states(prod, cons):
            need = 0
            pc = prod.cls
            cc = cons.cls
            pw_v = {r for r in prod.writes if _is_v(r)}
            pw_s = {r for r in prod.writes if r[0] == 's'}
            c_r_v = {r for r in cons.reads if _is_v(r)}
            c_w_v = {r for r in cons.writes if _is_v(r)}
            c_r_s = {r for r in cons.reads if r[0] == 's'}
            if pc == 'mfma':
                p = mfma_passes(prod.mn)
                if cc == 'mfma':
                    cregs = set(parse_operand(cons.ops[3])) if len(cons.ops) > 3 else set()
                    abregs = set(parse_operand(cons.ops[1])) | set(parse_operand(cons.ops[2]))
                    if abregs & pw_v:
                        need = max(need, {2: 5, 4: 8, 8: 12, 16: 20}[p])
                    if cregs & pw_v:
                        if cregs == pw_v and mfma_passes(cons.mn) == p:
                            need = max(need, {2: 2, 4: 0, 8: 0, 16: 0}[p])
                        else:
                            need = max(need, {2: 4, 4: 6, 8: 10, 16: 18}[p])
                    elif c_w_v & pw_v:
                        need = max(need, {2: 4, 4: 6, 8: 10, 16: 18}[p])
                elif cc in ('valu', 'vmem', 'ds'):
                    if (c_r_v | c_w_v) & pw_v:
                        need = max(need, {2: 5, 4: 8, 8: 12, 16: 20}[p])
                if cc == 'valu':
                    cregs = set(parse_operand(prod.ops[3])) if len(prod.ops) > 3 else set()
                    if c_w_v & cregs:
                        need = max(need, {2: 1, 4: 3, 8: 7, 16: 15}[p])
            elif pc == 'valu':
                if prod.mn.startswith('v_dot') and cc in ('valu', 'mfma', 'vmem', 'ds'):
                    if (c_r_v | c_w_v) & pw_v:
                        same = cons.mn == prod.mn and len(cons.ops) > 3 and \
                            not ((set(parse_operand(cons.ops[1])) | set(parse_operand(cons.ops[2]))) & pw_v)
                        if not same:
                            need = max(need, 3)
                if cc == 'mfma':
                    if c_r_v & pw_v:
                        need = max(need, 2)
                    if ('s', 126) in prod.writes:
                        need = max(need, 4)
                elif cc == 'valu':
                    cmn = cons.mn
                    if (c_r_v & pw_v):
                        if cmn.startswith('v_readlane') or cmn.startswith('v_readfirstlane'):
                            need = max(need, 1)
                        if cmn.startswith('v_permlane'):
                            need = max(need, 2)
                        if '_dpp' in cmn or any(m.startswith(('quad_perm', 'row_', 'wave_')) for m in cons.mods):
                            need = max(need, 2)
                        if _base(prod.mn) in TRANS and _base(cmn) not in TRANS:
                            need = max(need, 1)
                        if prod.mn.startswith('v_cvt_pk') or 'sdwa' in prod.mn:
                            pass
                    if c_r_s & pw_s:
                        need = max(need, 2)
                        if cmn.startswith('v_readlane') or cmn.startswith('v_writelane'):
                            need = max(need, 4)
                        if cmn.startswith('v_div_fmas'):
                            need = max(need, 4)
                    if ('s', 126) in prod.writes:
                        if cmn.startswith('v_readlane') or cmn.startswith('v_readfirstlane') or \
                                cmn.startswith('v_permlane'):
                            need = max(need, 4)
                        if '_dpp' in cmn:
                            need = max(need, 5)
                elif cc == 'vmem':
                    if c_r_s & pw_s:
                        need = max(need, 5)
                elif cc in ('salu', 'smem', 'branch'):
                    if c_r_s & pw_s:
                        need = max(need, 1)
            elif pc == 'vmem':
                if ('store' in prod.mn) and ('x4' in prod.mn or 'x3' in prod.mn) and cc == 'valu':
                    data = set(parse_operand(prod.ops[0] if prod.mn.startswith('buffer') else prod.ops[1]))
                    if c_w_v & data:
                        need = max(need, 2)
            elif pc == 'salu':
                if ('s', 124) in prod.writes and cc == 'vmem' and (('s', 124) in cons.reads):
                    need = max(need, 1)
            return need

        MAXW = 20
        for ins in self.items:
            if ins.is_label:
                out.append(ins)
                continue
            need = 0
            for prod, age in hist:
                n = need_states(prod, ins)
                if n > age:
                    need = max(need, n - age)
            is_branch = ins.cls == 'branch'
            if is_branch:
                for prod, age in hist:
                    if prod.cls == 'mfma':
                        w = {2: 5, 4: 8, 8: 12, 16: 20}[mfma_passes(prod.mn)]
                    elif prod.cls == 'valu':
                        w = 5 if any(r[0] == 's' for r in prod.writes) else 2
                    else:
                        w = 0
                    if w > age:
                        need = max(need, w - age)
            while need > 0:
                k = min(need, 16)
                out.append(Inst('s_nop %d' % (k - 1)))
                for h in hist:
                    h[1] += k
                need -= k
            out.append(ins)
            slots = 1
            if ins.mn == 's_nop':
                slots = int(ins.ops[0], 0) + 1
            for h in hist:
                h[1] += slots
            hist = [h for h in hist if h[1] < MAXW]
            if ins.cls in ('mfma', 'valu', 'vmem', 'salu'):
                hist.append([ins, 0])
        self.items = out

    def finalize(self):
        self._waitcnt_pass()
        self._hazard_pass()
        vh = 0
        sh = 0
        ah = -1
        for ins in self.items:
            if ins.is_label:
                continue
            for (k, i) in ins.reads | ins.writes:
                if k == 'v':
                    vh = max(vh, i + 1)
                elif k == 'a':
                    ah = max(ah, i)
                elif k == 's' and i < 104:
                    sh = max(sh, i + 1)
        self.vgpr_hi = vh
        self.sgpr_hi = sh
        self.agpr_hi = ah + 1

    def text(self):
        lines = ['.p2align 8', '.type %s,@function' % self.name, '%s:' % self.name]
        for ins in self.items:
            if ins.is_label:
                lines.append(ins.label + ':')
            else:
                lines.append('    ' + ins.text)
        return '\n'.join(lines) + '\n'

    def descriptor(self, extra=''):
        acc = max(4, (self.vgpr_hi + 3) // 4 * 4)
        nfv = acc + self.agpr_hi if self.agpr_hi else self.vgpr_hi
        nfv = max(nfv, 1)
        return ('.p2align 6\n.amdhsa_kernel %s\n'
                '  .amdhsa_next_free_vgpr %d\n'
                '  .amdhsa_next_free_sgpr %d\n'
                '  .amdhsa_accum_offset %d\n'
                '  .amdhsa_group_segment_fixed_size 0\n'
                '  .amdhsa_kernarg_size 80\n'
                '  .amdhsa_user_sgpr_count 2\n'
                '  .amdhsa_user_sgpr_kernarg_segment_ptr 1\n'
                '  .amdhsa_system_sgpr_workgroup_id_x 1\n'
                '%s'
                '.end_amdhsa_kernel\n') % (self.name, nfv, max(self.sgpr_hi, 8), acc, extra)


def build_file(kernels, launches):
    hdr = []
    for (name, grid, block, lds) in launches:
        hdr.append('; @launch kernel=%s grid=(%d,%d,%d) block=(%d,%d,%d) lds=%d' %
                   (name, grid[0], grid[1], grid[2], block[0], block[1], block[2], lds))
    s = '\n'.join(hdr) + '\n'
    s += '.amdgcn_target "amdgcn-amd-amdhsa--gfx950"\n.text\n'
    for k in kernels:
        s += '.globl %s\n' % k.name
        s += k.text()
    s += '.section .rodata,"a"\n'
    for k in kernels:
        s += k.descriptor()
    return s
```

```python
from asmlib import Kernel
from gemm import RA, vr, sr, make_srd, f32bits
import math

S_LEN = 2048
NH = 16
DH = 28


def attn_kernel(name, qkv, ao):
    k = Kernel(name)
    KT = 64
    NIT = S_LEN // KT
    PK = 80
    PV = 64
    szK = KT * PK
    szV = KT * PV
    offV = 2 * szK
    lds_total = offV + 2 * szV
    nwg = NH * (S_LEN // 128)
    CSC = (DH ** -0.5) * math.log2(math.e)

    s = RA(4, 100)
    v = RA(1, 256)
    sTmp = s.alloc(2, 2)
    srdQ = s.alloc(4, 4)
    srdO = s.alloc(4, 4)
    sHead = s.alloc(); sQb = s.alloc(); sT = s.alloc(); sKoff = s.alloc(); sVoff = s.alloc()
    sCnt = s.alloc(); sC = s.alloc()

    k('s_cmp_ge_u32 s2, %d' % nwg)
    k('s_cbranch_scc1 L_end_%s' % name)
    k('s_lshr_b32 %s, s2, 4' % sr(sHead))
    k('s_and_b32 %s, s2, 15' % sr(sQb))
    make_srd(k, srdQ, sTmp, qkv, 3 * 16 * 2048 * 64)
    make_srd(k, srdO, sTmp, ao, 2048 * 448 * 2)
    k('s_mov_b32 %s, 0x%08x' % (sr(sC), f32bits(CSC)))

    vLane = v.alloc(); vWave = v.alloc(); vHH = v.alloc()
    t1 = v.alloc(); t2 = v.alloc(); t3 = v.alloc(); t4 = v.alloc()
    k('v_and_b32 %s, 63, v0' % vr(vLane))
    k('v_lshrrev_b32 %s, 6, v0' % vr(vWave))
    k('v_lshrrev_b32 %s, 5, %s' % (vr(vHH), vr(vLane)))

    vQ = v.alloc(8, 4)
    vQoff = v.alloc()
    k('v_and_b32 %s, 31, %s' % (vr(t1), vr(vLane)))
    k('v_lshl_add_u32 %s, %s, 5, %s' % (vr(t1), vr(vWave), vr(t1)))
    k('s_lshl_b32 %s, %s, 7' % (sr(sT), sr(sQb)))
    k('v_add_u32 %s, %s, %s' % (vr(t1), sr(sT), vr(t1)))
    vQrow = v.alloc()
    k('v_mov_b32 %s, %s' % (vr(vQrow), vr(t1)))
    k('s_lshl_b32 %s, %s, 11' % (sr(sT), sr(sHead)))
    k('v_add_u32 %s, %s, %s' % (vr(t1), sr(sT), vr(t1)))
    k('v_lshlrev_b32 %s, 6, %s' % (vr(vQoff), vr(t1)))
    k('v_lshl_add_u32 %s, %s, 4, %s' % (vr(vQoff), vr(vHH), vr(vQoff)))
    k('buffer_load_dwordx4 %s, %s, %s, 0 offen' % (vr(vQ, 4), vr(vQoff), sr(srdQ, 4)))
    k('buffer_load_dwordx4 %s, %s, %s, 0 offen offset:32' % (vr(vQ + 4, 4), vr(vQoff), sr(srdQ, 4)))

    vKg = v.alloc(); vKst = v.alloc(); vVst = v.alloc(); vMask = v.alloc(); vOne = v.alloc()
    k('v_lshrrev_b32 %s, 2, v0' % vr(t1))
    k('v_and_b32 %s, 3, v0' % vr(t2))
    k('v_lshlrev_b32 %s, 6, %s' % (vr(vKg), vr(t1)))
    k('v_lshl_add_u32 %s, %s, 4, %s' % (vr(vKg), vr(t2), vr(vKg)))
    k('v_mul_u32_u24 %s, %d, %s' % (vr(vKst), PK, vr(t1)))
    k('v_lshl_add_u32 %s, %s, 4, %s' % (vr(vKst), vr(t2), vr(vKst)))
    k('v_mul_u32_u24 %s, %d, %s' % (vr(vVst), PV, vr(t1)))
    k('v_lshl_add_u32 %s, %s, 4, %s' % (vr(vVst), vr(t2), vr(vVst)))
    k('v_add_u32 %s, %d, %s' % (vr(vVst), offV, vr(vVst)))
    k('v_cmp_eq_u32 vcc, 3, %s' % vr(t2))
    k('v_cndmask_b32 %s, -1, 0, vcc' % vr(vMask))
    k('v_mov_b32 %s, 0x3f80' % vr(t3))
    k('v_cndmask_b32 %s, 0, %s, vcc' % (vr(vOne), vr(t3)))
    k('s_lshl_b32 %s, %s, 17' % (sr(sKoff), sr(sHead)))
    k('s_add_u32 %s, %s, 0x400000' % (sr(sVoff), sr(sKoff)))
    k('s_add_u32 %s, %s, 0x200000' % (sr(sKoff), sr(sKoff)))
    vKd = v.alloc(4, 4); vVd = v.alloc(4, 4)

    def load_tile():
        k('buffer_load_dwordx4 %s, %s, %s, %s offen' % (vr(vKd, 4), vr(vKg), sr(srdQ, 4), sr(sKoff)))
        k('buffer_load_dwordx4 %s, %s, %s, %s offen' % (vr(vVd, 4), vr(vKg), sr(srdQ, 4), sr(sVoff)))
        k('s_add_u32 %s, %s, %d' % (sr(sKoff), sr(sKoff), KT * 64))
        k('s_add_u32 %s, %s, %d' % (sr(sVoff), sr(sVoff), KT * 64))

    def store_tile(p):
        k('v_and_b32 %s, %s, %s' % (vr(vKd + 2), vr(vMask), vr(vKd + 2)))
        k('v_and_b32 %s, %s, %s' % (vr(vKd + 3), vr(vMask), vr(vKd + 3)))
        k('v_and_or_b32 %s, %s, %s, %s' % (vr(vVd + 2), vr(vVd + 2), vr(vMask), vr(vOne)))
        k('v_and_b32 %s, %s, %s' % (vr(vVd + 3), vr(vMask), vr(vVd + 3)))
        k('ds_write_b128 %s, %s offset:%d' % (vr(vKst), vr(vKd, 4), p * szK))
        k('ds_write_b128 %s, %s offset:%d' % (vr(vVst), vr(vVd, 4), p * szV))

    vKa = v.alloc(); vVa = v.alloc()
    k('v_and_b32 %s, 31, %s' % (vr(t1), vr(vLane)))
    k('v_mul_u32_u24 %s, %d, %s' % (vr(vKa), PK, vr(t1)))
    k('v_lshl_add_u32 %s, %s, 4, %s' % (vr(vKa), vr(vHH), vr(vKa)))
    k('v_bfe_u32 %s, %s, 2, 2' % (vr(t1), vr(vLane)))
    k('v_lshl_add_u32 %s, %s, 2, %s' % (vr(t1), vr(vHH), vr(t1)))
    k('v_mul_u32_u24 %s, %d, %s' % (vr(vVa), PV, vr(t1)))
    k('v_bfe_u32 %s, %s, 4, 1' % (vr(t2), vr(vLane)))
    k('v_lshl_add_u32 %s, %s, 5, %s' % (vr(vVa), vr(t2), vr(vVa)))
    k('v_and_b32 %s, 3, %s' % (vr(t2), vr(vLane)))
    k('v_lshl_add_u32 %s, %s, 3, %s' % (vr(vVa), vr(t2), vr(vVa)))
    k('v_add_u32 %s, %d, %s' % (vr(vVa), offV, vr(vVa)))

    vS = v.alloc(32, 4)
    vP = v.alloc(16, 4)
    vO = v.alloc(16, 4)
    vKf = v.alloc(16, 4)
    vVf = v.alloc(16, 4)
    vM = v.alloc(); vMx = v.alloc(); vAl = v.alloc(); vMc = v.alloc()
    for r in range(16):
        k('v_mov_b32 %s, 0' % vr(vO + r))
    k('v_mov_b32 %s, 0xff800000' % vr(vM))

    load_tile()
    store_tile(0)
    k('v_cmp_eq_u32 vcc, 1, %s' % vr(vHH))
    k('v_cndmask_b32 %s, -1, 0, vcc' % vr(t1))
    k('v_and_b32 %s, %s, %s' % (vr(vQ + 6), vr(t1), vr(vQ + 6)))
    k('v_and_b32 %s, %s, %s' % (vr(vQ + 7), vr(t1), vr(vQ + 7)))
    k('s_waitcnt lgkmcnt(0)')
    k('s_barrier')
    k('s_mov_b32 %s, 0' % sr(sCnt))
    k.label('L_loop_%s' % name)
    for p in range(2):
        load_tile()
        for kb in range(2):
            for c in range(2):
                k('ds_read_b128 %s, %s offset:%d' %
                  (vr(vKf + 8 * kb + 4 * c, 4), vr(vKa), p * szK + kb * 32 * PK + c * 32))
        for kb in range(2):
            k('v_mfma_f32_32x32x16_bf16 %s, %s, %s, 0' % (vr(vS + 16 * kb, 16), vr(vKf + 8 * kb, 4), vr(vQ, 4)))
            k('v_mfma_f32_32x32x16_bf16 %s, %s, %s, %s' %
              (vr(vS + 16 * kb, 16), vr(vKf + 8 * kb + 4, 4), vr(vQ + 4, 4), vr(vS + 16 * kb, 16)))
        for kg in range(4):
            base = p * szV + kg * 16 * PV
            k('ds_read_b64_tr_b16 %s, %s offset:%d' % (vr(vVf + 4 * kg, 2), vr(vVa), base))
            k('ds_read_b64_tr_b16 %s, %s offset:%d' % (vr(vVf + 4 * kg + 2, 2), vr(vVa), base + 8 * PV))
        k('v_max3_f32 %s, %s, %s, %s' % (vr(vMx), vr(vS), vr(vS + 1), vr(vS + 2)))
        for j in range(3, 31, 2):
            k('v_max3_f32 %s, %s, %s, %s' % (vr(vMx), vr(vMx), vr(vS + j), vr(vS + j + 1)))
        k('v_max_f32 %s, %s, %s' % (vr(vMx), vr(vMx), vr(vS + 31)))
        k('v_mov_b32 %s, %s' % (vr(t1), vr(vMx)))
        k('v_permlane32_swap_b32 %s, %s' % (vr(vMx), vr(t1)))
        k('v_max3_f32 %s, %s, %s, %s' % (vr(vMx), vr(vMx), vr(t1), vr(vM)))
        k('v_sub_f32 %s, %s, %s' % (vr(vAl), vr(vM), vr(vMx)))
        k('v_mul_f32 %s, %s, %s' % (vr(vAl), sr(sC), vr(vAl)))
        k('v_exp_f32 %s, %s' % (vr(vAl), vr(vAl)))
        k('v_mov_b32 %s, %s' % (vr(vM), vr(vMx)))
        k('v_mul_f32 %s, %s, %s' % (vr(vMc), sr(sC), vr(vMx)))
        for j in range(32):
            k('v_fma_f32 %s, %s, %s, -%s' % (vr(vS + j), vr(vS + j), sr(sC), vr(vMc)))
            k('v_exp_f32 %s, %s' % (vr(vS + j), vr(vS + j)))
        for j in range(16):
            k('v_cvt_pk_bf16_f32 %s, %s, %s' % (vr(vP + j), vr(vS + 2 * j), vr(vS + 2 * j + 1)))
        for r in range(16):
            k('v_mul_f32 %s, %s, %s' % (vr(vO + r), vr(vAl), vr(vO + r)))
        for kg in range(4):
            k('v_mfma_f32_32x32x16_bf16 %s, %s, %s, %s' %
              (vr(vO, 16), vr(vVf + 4 * kg, 4), vr(vP + 4 * kg, 4), vr(vO, 16)))
        store_tile(p ^ 1)
        k('s_waitcnt lgkmcnt(0)')
        k('s_barrier')
    k('s_add_u32 %s, %s, 1' % (sr(sCnt), sr(sCnt)))
    k('s_cmp_lt_u32 %s, %d' % (sr(sCnt), NIT // 2))
    k('s_cbranch_scc1 L_loop_%s' % name)

    k('v_mov_b32 %s, %s' % (vr(t1), vr(vO + 12)))
    k('v_mov_b32 %s, %s' % (vr(t2), vr(vO + 12)))
    k('v_permlane32_swap_b32 %s, %s' % (vr(t1), vr(t2)))
    k('v_rcp_f32 %s, %s' % (vr(t2), vr(t2)))
    vOoff = v.alloc()
    k('v_mul_u32_u24 %s, 896, %s' % (vr(vOoff), vr(vQrow)))
    k('s_mul_i32 %s, %s, 56' % (sr(sT), sr(sHead)))
    k('v_add_u32 %s, %s, %s' % (vr(vOoff), sr(sT), vr(vOoff)))
    k('v_lshl_add_u32 %s, %s, 3, %s' % (vr(vOoff), vr(vHH), vr(vOoff)))
    for r in range(16):
        k('v_mul_f32 %s, %s, %s' % (vr(vO + r), vr(t2), vr(vO + r)))
    for g in range(4):
        k('v_cvt_pk_bf16_f32 %s, %s, %s' % (vr(vP + 2 * g), vr(vO + 4 * g), vr(vO + 4 * g + 1)))
        k('v_cvt_pk_bf16_f32 %s, %s, %s' % (vr(vP + 2 * g + 1), vr(vO + 4 * g + 2), vr(vO + 4 * g + 3)))
    for g in range(3):
        k('buffer_store_dwordx2 %s, %s, %s, 0 offen offset:%d' % (vr(vP + 2 * g, 2), vr(vOoff), sr(srdO, 4), g * 16))
    k('s_mov_b32 exec_hi, 0')
    k('buffer_store_dwordx2 %s, %s, %s, 0 offen offset:48' % (vr(vP + 6, 2), vr(vOoff), sr(srdO, 4)))
    k('s_mov_b32 exec_hi, -1')
    k.label('L_end_%s' % name)
    k('s_endpgm')
    k.lds = lds_total
    k.nwg = nwg
    return k
```

```python
from asmlib import Kernel

M_ROWS = 2048


class RA:
    def __init__(self, start, limit):
        self.n = start
        self.limit = limit

    def alloc(self, cnt=1, align=1):
        self.n = (self.n + align - 1) // align * align
        r = self.n
        self.n += cnt
        assert self.n <= self.limit, 'out of registers'
        return r


def vr(b, n=1):
    return 'v%d' % b if n == 1 else 'v[%d:%d]' % (b, b + n - 1)


def sr(b, n=1):
    return 's%d' % b if n == 1 else 's[%d:%d]' % (b, b + n - 1)


SLOT = {'A_x': 0, 'A_wqkv': 8, 'A_wo': 16, 'B_x': 24, 'B_w1': 32, 'B_w3': 40, 'B_w2': 48,
        'out': 56, 'dbg': 64, 'ws': 72}


def make_srd(k, srd, tmp, src, size):
    slot, off = src
    k('s_load_dwordx2 %s, s[0:1], %d' % (sr(tmp, 2), SLOT[slot]))
    k('s_waitcnt lgkmcnt(0)')
    if off:
        k('s_add_u32 %s, %s, 0x%x' % (sr(srd), sr(tmp), off))
        k('s_addc_u32 %s, %s, 0' % (sr(srd + 1), sr(tmp + 1)))
    else:
        k('s_mov_b32 %s, %s' % (sr(srd), sr(tmp)))
        k('s_mov_b32 %s, %s' % (sr(srd + 1), sr(tmp + 1)))
    k('s_and_b32 %s, %s, 0xffff' % (sr(srd + 1), sr(srd + 1)))
    k('s_mov_b32 %s, 0x%x' % (sr(srd + 2), size))
    k('s_mov_b32 %s, 0x00020000' % sr(srd + 3))


def gemm_kernel(name, K, N, BM, BN, A, Ws, epi, ln=False, epi_args=None):
    k = Kernel(name)
    BK = 64
    NC = K // BK
    NW = len(Ws)
    NTM = M_ROWS // BM
    NTN = N // BN
    nwg = NTM * NTN
    lda = K * 2
    ldw = N * 2
    PA = BK * 2 + 16
    PW = BN * 2 + (64 if (BN * 2) % 256 == 0 or (BN * 2) % 256 == 128 else 0)
    assert PW % 256 in (64, 192), PW
    szA = BM * PA
    szW = BK * PW
    offW = 2 * szA
    lds_total = offW + 2 * NW * szW
    TM = BM // 64
    TN = BN // 64
    TPR = 256 // BM
    PPT = 8 // TPR
    WPT = BN * 2 // 16 * BK // 256
    WTPR = BN * 2 // 16 // WPT
    WTPR = 256 // BK
    WPT = (BN * 2 // 16) // WTPR

    s = RA(4, 100)
    v = RA(1, 256)
    sTmp = s.alloc(2, 2)
    srdA = s.alloc(4, 4)
    srdW = [s.alloc(4, 4) for _ in range(NW)]
    srdO = s.alloc(4, 4)
    srdR = s.alloc(4, 4)
    sTm = s.alloc(); sTn = s.alloc(); sWoff = s.alloc(); sT2 = s.alloc(); sT3 = s.alloc()

    k('s_cmp_ge_u32 s2, %d' % nwg)
    k('s_cbranch_scc1 L_end_%s' % name)
    k('s_mov_b32 %s, 0x%x' % (sT2, 0) if False else 's_nop 0')
    magic = (1 << 32) // NTN + 1
    k('s_mul_hi_u32 %s, s2, 0x%x' % (sr(sTm), magic))
    k('s_mul_i32 %s, %s, %d' % (sr(sT2), sr(sTm), NTN))
    k('s_sub_u32 %s, s2, %s' % (sr(sTn), sr(sT2)))

    make_srd(k, srdA, sTmp, A, M_ROWS * lda)
    for i in range(NW):
        make_srd(k, srdW[i], sTmp, Ws[i], K * ldw)

    vLane = v.alloc(); vT = v.alloc(); vWave = v.alloc()
    k('v_and_b32 %s, 63, v0' % vr(vLane))
    k('v_lshrrev_b32 %s, 6, v0' % vr(vWave))
    vAg = v.alloc(); vAst = v.alloc()
    t1 = v.alloc(); t2 = v.alloc(); t3 = v.alloc(); t4 = v.alloc()
    sh = {4: 2, 2: 1}[TPR]
    k('v_lshrrev_b32 %s, %d, v0' % (vr(t1), sh))
    k('v_and_b32 %s, %d, v0' % (vr(t2), TPR - 1))
    k('v_lshlrev_b32 %s, 4, %s' % (vr(t2), vr(t2)))
    k('s_mul_i32 %s, %s, %d' % (sr(sT2), sr(sTm), BM * lda))
    k('v_mul_u32_u24 %s, %d, %s' % (vr(vAg), lda, vr(t1)))
    k('v_add3_u32 %s, %s, %s, %s' % (vr(vAg), vr(vAg), vr(t2), sr(sT2)))
    k('v_mul_u32_u24 %s, %d, %s' % (vr(vAst), PA, vr(t1)))
    k('v_add_u32 %s, %s, %s' % (vr(vAst), vr(vAst), vr(t2)))
    vWg = v.alloc(); vWst = v.alloc()
    k('v_lshrrev_b32 %s, 2, v0' % vr(t1))
    k('v_and_b32 %s, 3, v0' % vr(t2))
    k('v_lshlrev_b32 %s, 4, %s' % (vr(t2), vr(t2)))
    k('s_mul_i32 %s, %s, %d' % (sr(sT2), sr(sTn), BN * 2))
    k('v_mul_u32_u24 %s, %d, %s' % (vr(vWg), ldw, vr(t1)))
    k('v_add3_u32 %s, %s, %s, %s' % (vr(vWg), vr(vWg), vr(t2), sr(sT2)))
    k('v_mul_u32_u24 %s, %d, %s' % (vr(vWst), PW, vr(t1)))
    k('v_add_u32 %s, %s, %s' % (vr(vWst), vr(vWst), vr(t2)))
    k('v_add_u32 %s, %d, %s' % (vr(vWst), offW, vr(vWst)))
    vXa = v.alloc(); vWa = v.alloc()
    k('v_lshrrev_b32 %s, 1, %s' % (vr(t1), vr(vWave)))
    k('v_and_b32 %s, 1, %s' % (vr(t2), vr(vWave)))
    k('v_and_b32 %s, 31, %s' % (vr(t3), vr(vLane)))
    k('v_mul_u32_u24 %s, %d, %s' % (vr(t1), BM // 2, vr(t1)))
    k('v_add_u32 %s, %s, %s' % (vr(t3), vr(t3), vr(t1)))
    k('v_mul_u32_u24 %s, %d, %s' % (vr(vXa), PA, vr(t3)))
    k('v_lshrrev_b32 %s, 5, %s' % (vr(t4), vr(vLane)))
    k('v_lshlrev_b32 %s, 4, %s' % (vr(t4), vr(t4)))
    k('v_add_u32 %s, %s, %s' % (vr(vXa), vr(vXa), vr(t4)))
    k('v_lshrrev_b32 %s, 5, %s' % (vr(t1), vr(vLane)))
    k('v_lshlrev_b32 %s, 3, %s' % (vr(t1), vr(t1)))
    k('v_bfe_u32 %s, %s, 2, 2' % (vr(t3), vr(vLane)))
    k('v_add_u32 %s, %s, %s' % (vr(t1), vr(t1), vr(t3)))
    k('v_mul_u32_u24 %s, %d, %s' % (vr(vWa), PW, vr(t1)))
    k('v_bfe_u32 %s, %s, 4, 1' % (vr(t3), vr(vLane)))
    k('v_lshlrev_b32 %s, 5, %s' % (vr(t3), vr(t3)))
    k('v_and_b32 %s, 3, %s' % (vr(t4), vr(vLane)))
    k('v_lshlrev_b32 %s, 3, %s' % (vr(t4), vr(t4)))
    k('v_add3_u32 %s, %s, %s, %s' % (vr(vWa), vr(vWa), vr(t3), vr(t4)))
    k('v_mul_u32_u24 %s, %d, %s' % (vr(t2), BN, vr(t2)))
    k('v_add_u32 %s, %s, %s' % (vr(vWa), vr(vWa), vr(t2)))
    k('v_add_u32 %s, %d, %s' % (vr(vWa), offW, vr(vWa)))

    if ln:
        NPIECE = K * 2 // 16 // TPR
        vAd = v.alloc(4 * NPIECE, 4)
    else:
        vAd = v.alloc(4 * PPT, 4)
    vWd = [v.alloc(4 * WPT, 4) for _ in range(NW)]
    vXf = v.alloc(4 * TM, 4)
    vWf = [v.alloc(4 * TN, 4) for _ in range(NW)]
    acc = [[[v.alloc(16, 4) for _ in range(TM)] for _ in range(TN)] for _ in range(NW)]
    for w in range(NW):
        for nb in range(TN):
            for mb in range(TM):
                for r in range(16):
                    k('v_mov_b32 %s, 0' % vr(acc[w][nb][mb] + r))

    def load_A(c):
        for j in range(PPT):
            if ln:
                continue
            k('buffer_load_dwordx4 %s, %s, %s, 0 offen offset:%d' %
              (vr(vAd + 4 * j, 4), vr(vAg), sr(srdA, 4), c * 128 + j * TPR * 16))

    def load_W(c):
        k('s_mov_b32 %s, %d' % (sr(sWoff), c * BK * ldw))
        for w in range(NW):
            for j in range(WPT):
                k('buffer_load_dwordx4 %s, %s, %s, %s offen offset:%d' %
                  (vr(vWd[w] + 4 * j, 4), vr(vWg), sr(srdW[w], 4), sr(sWoff), j * 64))

    def store_lds(c):
        p = c & 1
        for j in range(PPT):
            src = vAd + 4 * (j if not ln else (c * PPT + j))
            k('ds_write_b128 %s, %s offset:%d' % (vr(vAst), vr(src, 4), p * szA + j * TPR * 16))
        for w in range(NW):
            for j in range(WPT):
                k('ds_write_b128 %s, %s offset:%d' %
                  (vr(vWst), vr(vWd[w] + 4 * j, 4), (p * NW + w) * szW + j * 64))

    if ln:
        for j in range(NPIECE):
            c, jj = divmod(j, PPT)
            k('buffer_load_dwordx4 %s, %s, %s, 0 offen offset:%d' %
              (vr(vAd + 4 * j, 4), vr(vAg), sr(srdA, 4), c * 128 + jj * TPR * 16))
        load_W(0)
        vS = v.alloc(); vQ = v.alloc(); vOnes = v.alloc()
        k('v_mov_b32 %s, 0' % vr(vS)); k('v_mov_b32 %s, 0' % vr(vQ))
        k('v_mov_b32 %s, 0x3f803f80' % vr(vOnes))
        for j in range(4 * NPIECE):
            k('v_dot2_f32_bf16 %s, %s, %s, %s' % (vr(vS), vr(vAd + j), vr(vOnes), vr(vS)))
            k('v_dot2_f32_bf16 %s, %s, %s, %s' % (vr(vQ), vr(vAd + j), vr(vAd + j), vr(vQ)))
        perms = ['[1,0,3,2]', '[2,3,0,1]'] if TPR == 4 else ['[1,0,3,2]']
        for pm in perms:
            k('v_add_f32_dpp %s, %s, %s quad_perm:%s row_mask:0xf bank_mask:0xf' % (vr(t1), vr(vS), vr(vS), pm))
            k('v_add_f32_dpp %s, %s, %s quad_perm:%s row_mask:0xf bank_mask:0xf' % (vr(t2), vr(vQ), vr(vQ), pm))
            k('v_mov_b32 %s, %s' % (vr(vS), vr(t1)))
            k('v_mov_b32 %s, %s' % (vr(vQ), vr(t2)))
        k('v_mul_f32 %s, %r, %s' % (vr(vS), 1.0 / K, vr(vS)) if False else
          'v_mul_f32 %s, 0x%08x, %s' % (vr(vS), f32bits(1.0 / K), vr(vS)))
        k('v_mul_f32 %s, 0x%08x, %s' % (vr(vQ), f32bits(1.0 / K), vr(vQ)))
        k('v_fma_f32 %s, -%s, %s, %s' % (vr(vQ), vr(vS), vr(vS), vr(vQ)))
        k('v_max_f32 %s, 0, %s' % (vr(vQ), vr(vQ)))
        k('v_cvt_pk_bf16_f32 %s, %s, %s' % (vr(t1), vr(vS), vr(vQ)))
        k('v_lshlrev_b32 %s, 16, %s' % (vr(vS), vr(t1)))
        k('v_and_b32 %s, 0xffff0000, %s' % (vr(vQ), vr(t1)))
        k('v_add_f32 %s, 0x%08x, %s' % (vr(vQ), f32bits(1e-5), vr(vQ)))
        k('v_cvt_pk_bf16_f32 %s, %s, %s' % (vr(t1), vr(vQ), vr(vQ)))
        k('v_lshlrev_b32 %s, 16, %s' % (vr(vQ), vr(t1)))
        k('v_sqrt_f32 %s, %s' % (vr(vQ), vr(vQ)))
        k('v_cvt_pk_bf16_f32 %s, %s, %s' % (vr(t1), vr(vQ), vr(vQ)))
        k('v_lshlrev_b32 %s, 16, %s' % (vr(vQ), vr(t1)))
        k('v_rcp_f32 %s, %s' % (vr(vQ), vr(vQ)))
        for j in range(4 * NPIECE):
            x = vAd + j
            k('v_lshlrev_b32 %s, 16, %s' % (vr(t1), vr(x)))
            k('v_and_b32 %s, 0xffff0000, %s' % (vr(t2), vr(x)))
            k('v_sub_f32 %s, %s, %s' % (vr(t1), vr(t1), vr(vS)))
            k('v_sub_f32 %s, %s, %s' % (vr(t2), vr(t2), vr(vS)))
            k('v_cvt_pk_bf16_f32 %s, %s, %s' % (vr(t3), vr(t1), vr(t2)))
            k('v_lshlrev_b32 %s, 16, %s' % (vr(t1), vr(t3)))
            k('v_and_b32 %s, 0xffff0000, %s' % (vr(t2), vr(t3)))
            k('v_mul_f32 %s, %s, %s' % (vr(t1), vr(t1), vr(vQ)))
            k('v_mul_f32 %s, %s, %s' % (vr(t2), vr(t2), vr(vQ)))
            k('v_cvt_pk_bf16_f32 %s, %s, %s' % (vr(x), vr(t1), vr(t2)))
    else:
        load_A(0)
        load_W(0)

    store_lds(0)
    if NC > 1:
        load_A(1); load_W(1)
    k('s_waitcnt lgkmcnt(0)')
    k('s_barrier')
    for c in range(NC):
        p = c & 1
        for ks in range(BK // 16):
            for mb in range(TM):
                k('ds_read_b128 %s, %s offset:%d' %
                  (vr(vXf + 4 * mb, 4), vr(vXa), p * szA + mb * 32 * PA + ks * 32))
            for w in range(NW):
                for nb in range(TN):
                    base = (p * NW + w) * szW + ks * 16 * PW + nb * 64
                    k('ds_read_b64_tr_b16 %s, %s offset:%d' % (vr(vWf[w] + 4 * nb, 2), vr(vWa), base))
                    k('ds_read_b64_tr_b16 %s, %s offset:%d' % (vr(vWf[w] + 4 * nb + 2, 2), vr(vWa), base + 4 * PW))
            for w in range(NW):
                for nb in range(TN):
                    for mb in range(TM):
                        a = acc[w][nb][mb]
                        k('v_mfma_f32_32x32x16_bf16 %s, %s, %s, %s' %
                          (vr(a, 16), vr(vWf[w] + 4 * nb, 4), vr(vXf + 4 * mb, 4), vr(a, 16)))
        if c + 1 < NC:
            store_lds(c + 1)
            if c + 2 < NC:
                load_A(c + 2); load_W(c + 2)
            k('s_waitcnt lgkmcnt(0)')
            k('s_barrier')

    ctx = dict(k=k, v=v, s=s, acc=acc, TM=TM, TN=TN, BM=BM, BN=BN, vLane=vLane, vWave=vWave,
               sTm=sTm, sTn=sTn, sTmp=sTmp, srdO=srdO, srdR=srdR, t=(t1, t2, t3, t4), sT2=sT2, sT3=sT3,
               N=N, name=name)
    epi(ctx, **(epi_args or {}))
    k.label('L_end_%s' % name)
    k('s_endpgm')
    k.lds = lds_total
    k.nwg = nwg
    return k


def f32bits(x):
    import struct
    return struct.unpack('<I', struct.pack('<f', x))[0]


def lane_mn(ctx):
    k = ctx['k']; v = ctx['v']
    t1, t2, t3, t4 = ctx['t']
    vM = v.alloc(); vN = v.alloc()
    BM = ctx['BM']; BN = ctx['BN']
    k('v_lshrrev_b32 %s, 1, %s' % (vr(t1), vr(ctx['vWave'])))
    k('v_mul_u32_u24 %s, %d, %s' % (vr(t1), BM // 2, vr(t1)))
    k('v_and_b32 %s, 31, %s' % (vr(t2), vr(ctx['vLane'])))
    k('s_mul_i32 %s, %s, %d' % (sr(ctx['sT2']), sr(ctx['sTm']), BM))
    k('v_add3_u32 %s, %s, %s, %s' % (vr(vM), vr(t1), vr(t2), sr(ctx['sT2'])))
    k('v_and_b32 %s, 1, %s' % (vr(t1), vr(ctx['vWave'])))
    k('v_mul_u32_u24 %s, %d, %s' % (vr(t1), BN // 2, vr(t1)))
    k('v_lshrrev_b32 %s, 5, %s' % (vr(t2), vr(ctx['vLane'])))
    k('v_lshlrev_b32 %s, 2, %s' % (vr(t2), vr(t2)))
    k('s_mul_i32 %s, %s, %d' % (sr(ctx['sT2']), sr(ctx['sTn']), BN))
    k('v_add3_u32 %s, %s, %s, %s' % (vr(vN), vr(t1), vr(t2), sr(ctx['sT2'])))
    return vM, vN


def epi_resid(ctx, res, out):
    k = ctx['k']; v = ctx['v']
    t1, t2, t3, t4 = ctx['t']
    N = ctx['N']
    make_srd(k, ctx['srdO'], ctx['sTmp'], out, M_ROWS * N * 2)
    make_srd(k, ctx['srdR'], ctx['sTmp'], res, M_ROWS * N * 2)
    vM, vN = lane_mn(ctx)
    vOff = v.alloc()
    k('v_mul_u32_u24 %s, %d, %s' % (vr(vOff), N * 2, vr(vM)))
    k('v_lshl_add_u32 %s, %s, 1, %s' % (vr(vOff), vr(vN), vr(vOff)))
    TM, TN = ctx['TM'], ctx['TN']
    vR = v.alloc(2 * 4 * TM * TN, 2)
    idx = 0
    for nb in range(TN):
        for mb in range(TM):
            for g in range(4):
                k('buffer_load_dwordx2 %s, %s, %s, 0 offen offset:%d' %
                  (vr(vR + 2 * idx, 2), vr(vOff), sr(ctx['srdR'], 4), mb * 32 * N * 2 + nb * 64 + g * 16))
                idx += 1
    idx = 0
    for nb in range(TN):
        for mb in range(TM):
            a = ctx['acc'][0][nb][mb]
            for g in range(4):
                r = vR + 2 * idx
                for hpair in range(2):
                    a0 = a + 4 * g + 2 * hpair
                    k('v_cvt_pk_bf16_f32 %s, %s, %s' % (vr(t1), vr(a0), vr(a0 + 1)))
                    k('v_lshlrev_b32 %s, 16, %s' % (vr(t2), vr(t1)))
                    k('v_and_b32 %s, 0xffff0000, %s' % (vr(t1), vr(t1)))
                    k('v_lshlrev_b32 %s, 16, %s' % (vr(t3), vr(r + hpair)))
                    k('v_and_b32 %s, 0xffff0000, %s' % (vr(t4), vr(r + hpair)))
                    k('v_add_f32 %s, %s, %s' % (vr(t2), vr(t2), vr(t3)))
                    k('v_add_f32 %s, %s, %s' % (vr(t1), vr(t1), vr(t4)))
                    k('v_cvt_pk_bf16_f32 %s, %s, %s' % (vr(r + hpair), vr(t2), vr(t1)))
                k('buffer_store_dwordx2 %s, %s, %s, 0 offen offset:%d' %
                  (vr(r, 2), vr(vOff), sr(ctx['srdO'], 4), mb * 32 * N * 2 + nb * 64 + g * 16))
                idx += 1


def epi_plain(ctx, out):
    k = ctx['k']; v = ctx['v']
    N = ctx['N']
    make_srd(k, ctx['srdO'], ctx['sTmp'], out, M_ROWS * N * 2)
    vM, vN = lane_mn(ctx)
    vOff = v.alloc()
    k('v_mul_u32_u24 %s, %d, %s' % (vr(vOff), N * 2, vr(vM)))
    k('v_lshl_add_u32 %s, %s, 1, %s' % (vr(vOff), vr(vN), vr(vOff)))
    TM, TN = ctx['TM'], ctx['TN']
    vR = v.alloc(2, 2)
    for nb in range(TN):
        for mb in range(TM):
            a = ctx['acc'][0][nb][mb]
            for g in range(4):
                k('v_cvt_pk_bf16_f32 %s, %s, %s' % (vr(vR), vr(a + 4 * g), vr(a + 4 * g + 1)))
                k('v_cvt_pk_bf16_f32 %s, %s, %s' % (vr(vR + 1), vr(a + 4 * g + 2), vr(a + 4 * g + 3)))
                k('buffer_store_dwordx2 %s, %s, %s, 0 offen offset:%d' %
                  (vr(vR, 2), vr(vOff), sr(ctx['srdO'], 4), mb * 32 * N * 2 + nb * 64 + g * 16))


def epi_swiglu(ctx, out):
    k = ctx['k']; v = ctx['v']
    t1, t2, t3, t4 = ctx['t']
    N = ctx['N']
    make_srd(k, ctx['srdO'], ctx['sTmp'], out, M_ROWS * N * 2)
    vM, vN = lane_mn(ctx)
    vOff = v.alloc()
    k('v_mul_u32_u24 %s, %d, %s' % (vr(vOff), N * 2, vr(vM)))
    k('v_lshl_add_u32 %s, %s, 1, %s' % (vr(vOff), vr(vN), vr(vOff)))
    TM, TN = ctx['TM'], ctx['TN']
    vR = v.alloc(2, 2)
    vG = v.alloc(4, 2)
    for nb in range(TN):
        for mb in range(TM):
            ag = ctx['acc'][0][nb][mb]
            au = ctx['acc'][1][nb][mb]
            for g in range(4):
                for hp in range(2):
                    k('v_cvt_pk_bf16_f32 %s, %s, %s' % (vr(t1), vr(ag + 4 * g + 2 * hp), vr(ag + 4 * g + 2 * hp + 1)))
                    k('v_lshlrev_b32 %s, 16, %s' % (vr(vG), vr(t1)))
                    k('v_and_b32 %s, 0xffff0000, %s' % (vr(vG + 1), vr(t1)))
                    k('v_cvt_pk_bf16_f32 %s, %s, %s' % (vr(t1), vr(au + 4 * g + 2 * hp), vr(au + 4 * g + 2 * hp + 1)))
                    k('v_lshlrev_b32 %s, 16, %s' % (vr(vG + 2), vr(t1)))
                    k('v_and_b32 %s, 0xffff0000, %s' % (vr(vG + 3), vr(t1)))
                    for e in range(2):
                        k('v_mul_f32 %s, 0x%08x, %s' % (vr(t2), f32bits(-1.4426950408889634), vr(vG + e)))
                        k('v_exp_f32 %s, %s' % (vr(t2), vr(t2)))
                        k('v_add_f32 %s, 1.0, %s' % (vr(t2), vr(t2)))
                        k('v_rcp_f32 %s, %s' % (vr(t2), vr(t2)))
                        k('v_mul_f32 %s, %s, %s' % (vr(vG + e), vr(vG + e), vr(t2)))
                    k('v_cvt_pk_bf16_f32 %s, %s, %s' % (vr(t1), vr(vG), vr(vG + 1)))
                    k('v_lshlrev_b32 %s, 16, %s' % (vr(vG), vr(t1)))
                    k('v_and_b32 %s, 0xffff0000, %s' % (vr(vG + 1), vr(t1)))
                    k('v_mul_f32 %s, %s, %s' % (vr(vG), vr(vG), vr(vG + 2)))
                    k('v_mul_f32 %s, %s, %s' % (vr(vG + 1), vr(vG + 1), vr(vG + 3)))
                    k('v_cvt_pk_bf16_f32 %s, %s, %s' % (vr(vR + hp), vr(vG), vr(vG + 1)))
                k('buffer_store_dwordx2 %s, %s, %s, 0 offen offset:%d' %
                  (vr(vR, 2), vr(vOff), sr(ctx['srdO'], 4), mb * 32 * N * 2 + nb * 64 + g * 16))


def epi_qkv(ctx, qkv):
    k = ctx['k']; v = ctx['v']
    t1, t2, t3, t4 = ctx['t']
    make_srd(k, ctx['srdO'], ctx['sTmp'], qkv, 3 * 16 * 2048 * 64)
    vM, vN = lane_mn(ctx)
    TM, TN = ctx['TM'], ctx['TN']
    vR = v.alloc(2, 2)
    vOff = v.alloc()
    for nb in range(TN):
        for g in range(4):
            k('v_add_u32 %s, %d, %s' % (vr(t1), nb * 32 + 8 * g, vr(vN)))
            k('v_lshrrev_b32 %s, 2, %s' % (vr(t1), vr(t1)))
            k('v_mul_u32_u24 %s, 0x%x, %s' % (vr(t2), 9363, vr(t1)))
            k('v_lshrrev_b32 %s, 16, %s' % (vr(t2), vr(t2)))
            k('v_mul_u32_u24 %s, 7, %s' % (vr(t3), vr(t2)))
            k('v_sub_u32 %s, %s, %s' % (vr(t3), vr(t1), vr(t3)))
            k('v_lshlrev_b32 %s, 17, %s' % (vr(t2), vr(t2)))
            k('v_lshl_add_u32 %s, %s, 3, %s' % (vr(t2), vr(t3), vr(t2)))
            k('v_lshl_add_u32 %s, %s, 6, %s' % (vr(vOff), vr(vM), vr(t2)))
            for mb in range(TM):
                a = ctx['acc'][0][nb][mb]
                k('v_cvt_pk_bf16_f32 %s, %s, %s' % (vr(vR), vr(a + 4 * g), vr(a + 4 * g + 1)))
                k('v_cvt_pk_bf16_f32 %s, %s, %s' % (vr(vR + 1), vr(a + 4 * g + 2), vr(a + 4 * g + 3)))
                k('buffer_store_dwordx2 %s, %s, %s, 0 offen offset:%d' %
                  (vr(vR, 2), vr(vOff), sr(ctx['srdO'], 4), mb * 32 * 64))
```

```python
import sys
sys.path.insert(0, 'work')
from asmlib import build_file
from gemm import *
from attn import attn_kernel

WS_QKV = 0
WS_AO = 0x600000
WS_X1 = 0x800000
WS_X2 = 0xA00000
WS_H = 0xC00000

def build(out_path, nk=10):
    ks = []
    for L in range(2):
        xin = ('A_x', 0) if L == 0 else ('ws', WS_X2)
        xout2 = ('ws', WS_X2) if L == 0 else ('out', 0)
        ks.append(gemm_kernel('g1_%d_kernel' % L, 448, 1344, 64, 64, xin, [('A_wqkv', 0)], epi_qkv, ln=True,
                              epi_args=dict(qkv=('ws', WS_QKV))))
        ks.append(attn_kernel('attn_%d_kernel' % L, ('ws', WS_QKV), ('ws', WS_AO)))
        ks.append(gemm_kernel('g3_%d_kernel' % L, 448, 448, 64, 64, ('ws', WS_AO), [('A_wo', 0)], epi_resid,
                              epi_args=dict(res=xin, out=('ws', WS_X1))))
        ks.append(gemm_kernel('g4_%d_kernel' % L, 448, 1792, 64, 64, ('ws', WS_X1), [('B_w1', 0), ('B_w3', 0)],
                              epi_swiglu, ln=True, epi_args=dict(out=('ws', WS_H))))
        ks.append(gemm_kernel('g5_%d_kernel' % L, 1792, 448, 64, 64, ('ws', WS_H), [('B_w2', 0)], epi_resid,
                              epi_args=dict(res=('ws', WS_X1), out=xout2)))
    ks = ks[:nk]
    for k in ks:
        k.finalize()
        print(k.name, 'vgpr', k.vgpr_hi, 'sgpr', k.sgpr_hi, 'lds', k.lds, 'nwg', k.nwg, 'ninst', len(k.items))
    launches = [(k.name, (k.nwg, 1, 1), (256, 1, 1), k.lds) for k in ks]
    open(out_path, 'w').write(build_file(ks, launches))

if __name__ == '__main__':
    build(sys.argv[1] if len(sys.argv) > 1 else 'full.s', int(sys.argv[2]) if len(sys.argv) > 2 else 10)
```

```python
from asmlib import Kernel
from gemm import RA, vr, sr, make_srd, f32bits
import math

S_LEN = 2048
NH = 16
DH = 28


def attn_kernel(name, qkv, ao):
    k = Kernel(name)
    KT = 128
    NKB = KT // 32
    NIT = (S_LEN // 2) // KT
    PK = 80
    PV = 64
    szK = KT * PK
    szV = KT * PV
    offV = 4 * szK
    lds_total = offV + 4 * szV
    nwg = NH * (S_LEN // 64)
    CSC = (DH ** -0.5) * math.log2(math.e)

    s = RA(4, 100)
    v = RA(1, 256)
    sTmp = s.alloc(2, 2)
    srdQ = s.alloc(4, 4)
    srdO = s.alloc(4, 4)
    sHead = s.alloc(); sQb = s.alloc(); sT = s.alloc(); sKoff = s.alloc(); sVoff = s.alloc()
    sCnt = s.alloc(); sC = s.alloc(2, 2)

    k('s_cmp_ge_u32 s2, %d' % nwg)
    k('s_cbranch_scc1 L_end_%s' % name)
    k('s_and_b32 %s, s2, 7' % sr(sHead))
    k('s_lshl_b32 %s, %s, 1' % (sr(sHead), sr(sHead)))
    k('s_bfe_u32 %s, s2, 0x10003' % sr(sT))
    k('s_add_u32 %s, %s, %s' % (sr(sHead), sr(sHead), sr(sT)))
    k('s_lshr_b32 %s, s2, 4' % sr(sQb))
    make_srd(k, srdQ, sTmp, qkv, 3 * 16 * 2048 * 64)
    make_srd(k, srdO, sTmp, ao, 2048 * 448 * 2)
    k('s_mov_b32 %s, 0x%08x' % (sr(sC), f32bits(CSC)))
    k('s_mov_b32 %s, 0x%08x' % (sr(sC + 1), f32bits(CSC)))

    vLane = v.alloc(); vWave = v.alloc(); vHH = v.alloc(); vKh = v.alloc()
    t1 = v.alloc(); t2 = v.alloc(); t3 = v.alloc(); t4 = v.alloc()
    k('v_and_b32 %s, 63, v0' % vr(vLane))
    k('v_lshrrev_b32 %s, 6, v0' % vr(vWave))
    k('v_lshrrev_b32 %s, 5, %s' % (vr(vHH), vr(vLane)))
    k('v_lshrrev_b32 %s, 1, %s' % (vr(vKh), vr(vWave)))

    vQ = v.alloc(8, 4)
    vQoff = v.alloc()
    k('v_and_b32 %s, 31, %s' % (vr(t1), vr(vLane)))
    k('v_and_b32 %s, 1, %s' % (vr(t2), vr(vWave)))
    k('v_lshl_add_u32 %s, %s, 5, %s' % (vr(t1), vr(t2), vr(t1)))
    k('s_lshl_b32 %s, %s, 6' % (sr(sT), sr(sQb)))
    k('v_add_u32 %s, %s, %s' % (vr(t1), sr(sT), vr(t1)))
    vQrow = v.alloc()
    k('v_mov_b32 %s, %s' % (vr(vQrow), vr(t1)))
    k('s_lshl_b32 %s, %s, 11' % (sr(sT), sr(sHead)))
    k('v_add_u32 %s, %s, %s' % (vr(t1), sr(sT), vr(t1)))
    k('v_lshlrev_b32 %s, 6, %s' % (vr(vQoff), vr(t1)))
    k('v_lshl_add_u32 %s, %s, 4, %s' % (vr(vQoff), vr(vHH), vr(vQoff)))
    k('buffer_load_dwordx4 %s, %s, %s, 0 offen' % (vr(vQ, 4), vr(vQoff), sr(srdQ, 4)))
    k('buffer_load_dwordx4 %s, %s, %s, 0 offen offset:32' % (vr(vQ + 4, 4), vr(vQoff), sr(srdQ, 4)))

    vKg = v.alloc(); vKst = v.alloc(); vVst = v.alloc(); vMask = v.alloc(); vOne = v.alloc()
    k('v_bfe_u32 %s, v0, 2, 5' % vr(t1))
    k('v_and_b32 %s, 3, v0' % vr(t2))
    k('v_lshrrev_b32 %s, 7, v0' % vr(t3))
    k('v_lshl_add_u32 %s, %s, 10, %s' % (vr(t4), vr(t3), vr(t1)))
    k('v_lshlrev_b32 %s, 6, %s' % (vr(vKg), vr(t4)))
    k('v_lshl_add_u32 %s, %s, 4, %s' % (vr(vKg), vr(t2), vr(vKg)))
    k('v_mul_u32_u24 %s, %d, %s' % (vr(vKst), PK, vr(t1)))
    k('v_lshl_add_u32 %s, %s, 4, %s' % (vr(vKst), vr(t2), vr(vKst)))
    k('v_mul_u32_u24 %s, %d, %s' % (vr(t4), 2 * szK, vr(t3)))
    k('v_add_u32 %s, %s, %s' % (vr(vKst), vr(vKst), vr(t4)))
    k('v_mul_u32_u24 %s, %d, %s' % (vr(vVst), PV, vr(t1)))
    k('v_lshl_add_u32 %s, %s, 4, %s' % (vr(vVst), vr(t2), vr(vVst)))
    k('v_mul_u32_u24 %s, %d, %s' % (vr(t4), 2 * szV, vr(t3)))
    k('v_add3_u32 %s, %s, %s, %d' % (vr(vVst), vr(vVst), vr(t4), 0) if False else
      'v_add_u32 %s, %s, %s' % (vr(vVst), vr(vVst), vr(t4)))
    k('v_add_u32 %s, %d, %s' % (vr(vVst), offV, vr(vVst)))
    k('v_cmp_eq_u32 vcc, 3, %s' % vr(t2))
    k('v_cndmask_b32 %s, -1, 0, vcc' % vr(vMask))
    k('v_mov_b32 %s, 0x3f80' % vr(t3))
    k('v_cndmask_b32 %s, 0, %s, vcc' % (vr(vOne), vr(t3)))
    k('s_lshl_b32 %s, %s, 17' % (sr(sKoff), sr(sHead)))
    k('s_add_u32 %s, %s, 0x400000' % (sr(sVoff), sr(sKoff)))
    k('s_add_u32 %s, %s, 0x200000' % (sr(sKoff), sr(sKoff)))
    vKd = v.alloc(4 * NKB, 4); vVd = v.alloc(4 * NKB, 4)

    def load_tile():
        for h in range(NKB):
            k('buffer_load_dwordx4 %s, %s, %s, %s offen offset:%d' % (vr(vKd + 4 * h, 4), vr(vKg), sr(srdQ, 4), sr(sKoff), (h & 1) * 2048))
            k('buffer_load_dwordx4 %s, %s, %s, %s offen offset:%d' % (vr(vVd + 4 * h, 4), vr(vKg), sr(srdQ, 4), sr(sVoff), (h & 1) * 2048))
            if h == 1:
                k('s_add_u32 %s, %s, 4096' % (sr(sKoff), sr(sKoff)))
                k('s_add_u32 %s, %s, 4096' % (sr(sVoff), sr(sVoff)))
        k('s_add_u32 %s, %s, %d' % (sr(sKoff), sr(sKoff), 4096))
        k('s_add_u32 %s, %s, %d' % (sr(sVoff), sr(sVoff), 4096))

    def store_tile(p):
        for h in range(NKB):
            k('v_and_b32 %s, %s, %s' % (vr(vKd + 4 * h + 2), vr(vMask), vr(vKd + 4 * h + 2)))
            k('v_and_b32 %s, %s, %s' % (vr(vKd + 4 * h + 3), vr(vMask), vr(vKd + 4 * h + 3)))
            k('v_and_or_b32 %s, %s, %s, %s' % (vr(vVd + 4 * h + 2), vr(vVd + 4 * h + 2), vr(vMask), vr(vOne)))
            k('v_and_b32 %s, %s, %s' % (vr(vVd + 4 * h + 3), vr(vMask), vr(vVd + 4 * h + 3)))
            k('ds_write_b128 %s, %s offset:%d' % (vr(vKst), vr(vKd + 4 * h, 4), p * szK + h * 32 * PK))
            k('ds_write_b128 %s, %s offset:%d' % (vr(vVst), vr(vVd + 4 * h, 4), p * szV + h * 32 * PV))

    vKa = v.alloc(); vVa = v.alloc()
    k('v_and_b32 %s, 31, %s' % (vr(t1), vr(vLane)))
    k('v_mul_u32_u24 %s, %d, %s' % (vr(vKa), PK, vr(t1)))
    k('v_lshl_add_u32 %s, %s, 4, %s' % (vr(vKa), vr(vHH), vr(vKa)))
    k('v_mul_u32_u24 %s, %d, %s' % (vr(t2), 2 * szK, vr(vKh)))
    k('v_add_u32 %s, %s, %s' % (vr(vKa), vr(vKa), vr(t2)))
    k('v_bfe_u32 %s, %s, 2, 2' % (vr(t1), vr(vLane)))
    k('v_lshl_add_u32 %s, %s, 2, %s' % (vr(t1), vr(vHH), vr(t1)))
    k('v_mul_u32_u24 %s, %d, %s' % (vr(vVa), PV, vr(t1)))
    k('v_bfe_u32 %s, %s, 4, 1' % (vr(t2), vr(vLane)))
    k('v_lshl_add_u32 %s, %s, 5, %s' % (vr(vVa), vr(t2), vr(vVa)))
    k('v_and_b32 %s, 3, %s' % (vr(t2), vr(vLane)))
    k('v_lshl_add_u32 %s, %s, 3, %s' % (vr(vVa), vr(t2), vr(vVa)))
    k('v_mul_u32_u24 %s, %d, %s' % (vr(t2), 2 * szV, vr(vKh)))
    k('v_add_u32 %s, %s, %s' % (vr(vVa), vr(vVa), vr(t2)))
    k('v_add_u32 %s, %d, %s' % (vr(vVa), offV, vr(vVa)))

    vS = v.alloc(16 * NKB, 4)
    vP = v.alloc(8 * NKB, 4)
    vO = v.alloc(16, 4)
    vKf = v.alloc(8 * NKB, 4)
    vVf = v.alloc(8 * NKB, 4)
    vM = v.alloc(); vMx = v.alloc(); vAl = v.alloc(2, 2); vMc = v.alloc(2, 2)
    for r in range(16):
        k('v_mov_b32 %s, 0' % vr(vO + r))
    k('v_mov_b32 %s, 0xff800000' % vr(vM))

    load_tile()
    store_tile(0)
    k('v_cmp_eq_u32 vcc, 1, %s' % vr(vHH))
    k('v_cndmask_b32 %s, -1, 0, vcc' % vr(t1))
    k('v_and_b32 %s, %s, %s' % (vr(vQ + 6), vr(t1), vr(vQ + 6)))
    k('v_and_b32 %s, %s, %s' % (vr(vQ + 7), vr(t1), vr(vQ + 7)))
    k('s_waitcnt lgkmcnt(0)')
    k('s_barrier')
    k('s_mov_b32 %s, 0' % sr(sCnt))
    k.label('L_loop_%s' % name)
    for p in range(2):
        load_tile()
        for kb in range(NKB):
            for c in range(2):
                k('ds_read_b128 %s, %s offset:%d' %
                  (vr(vKf + 8 * kb + 4 * c, 4), vr(vKa), p * szK + kb * 32 * PK + c * 32))
        for kb in range(NKB):
            k('v_mfma_f32_32x32x16_bf16 %s, %s, %s, 0' % (vr(vS + 16 * kb, 16), vr(vKf + 8 * kb, 4), vr(vQ, 4)))
            k('v_mfma_f32_32x32x16_bf16 %s, %s, %s, %s' %
              (vr(vS + 16 * kb, 16), vr(vKf + 8 * kb + 4, 4), vr(vQ + 4, 4), vr(vS + 16 * kb, 16)))
        for kg in range(2 * NKB):
            base = p * szV + kg * 16 * PV
            k('ds_read_b64_tr_b16 %s, %s offset:%d' % (vr(vVf + 4 * kg, 2), vr(vVa), base))
            k('ds_read_b64_tr_b16 %s, %s offset:%d' % (vr(vVf + 4 * kg + 2, 2), vr(vVa), base + 8 * PV))
        k('v_max3_f32 %s, %s, %s, %s' % (vr(vMx), vr(vS), vr(vS + 1), vr(vS + 2)))
        for j in range(3, 16 * NKB - 1, 2):
            k('v_max3_f32 %s, %s, %s, %s' % (vr(vMx), vr(vMx), vr(vS + j), vr(vS + j + 1)))
        k('v_max_f32 %s, %s, %s' % (vr(vMx), vr(vMx), vr(vS + 16 * NKB - 1)))
        k('v_mov_b32 %s, %s' % (vr(t1), vr(vMx)))
        k('v_permlane32_swap_b32 %s, %s' % (vr(vMx), vr(t1)))
        k('v_max3_f32 %s, %s, %s, %s' % (vr(vMx), vr(vMx), vr(t1), vr(vM)))
        k('v_sub_f32 %s, %s, %s' % (vr(vAl), vr(vM), vr(vMx)))
        k('v_mul_f32 %s, %s, %s' % (vr(vAl), sr(sC), vr(vAl)))
        k('v_exp_f32 %s, %s' % (vr(vAl), vr(vAl)))
        k('v_mov_b32 %s, %s' % (vr(vM), vr(vMx)))
        k('v_mul_f32 %s, %s, %s' % (vr(vMc), sr(sC), vr(vMx)))
        k('v_sub_f32 %s, 0, %s' % (vr(vMc), vr(vMc)))
        k('v_mov_b32 %s, %s' % (vr(vMc + 1), vr(vMc)))
        k('v_mov_b32 %s, %s' % (vr(vAl + 1), vr(vAl)))
        for j in range(8 * NKB):
            k('v_pk_fma_f32 %s, %s, %s, %s' % (vr(vS + 2 * j, 2), vr(vS + 2 * j, 2), sr(sC, 2), vr(vMc, 2)))
        for j in range(16 * NKB):
            k('v_exp_f32 %s, %s' % (vr(vS + j), vr(vS + j)))
        for j in range(8 * NKB):
            k('v_cvt_pk_bf16_f32 %s, %s, %s' % (vr(vP + j), vr(vS + 2 * j), vr(vS + 2 * j + 1)))
        for r in range(8):
            k('v_pk_mul_f32 %s, %s, %s' % (vr(vO + 2 * r, 2), vr(vO + 2 * r, 2), vr(vAl, 2)))
        for kg in range(2 * NKB):
            k('v_mfma_f32_32x32x16_bf16 %s, %s, %s, %s' %
              (vr(vO, 16), vr(vVf + 4 * kg, 4), vr(vP + 4 * kg, 4), vr(vO, 16)))
        store_tile(p ^ 1)
        k('s_waitcnt lgkmcnt(0)')
        k('s_barrier')
    k('s_add_u32 %s, %s, 1' % (sr(sCnt), sr(sCnt)))
    k('s_cmp_lt_u32 %s, %d' % (sr(sCnt), NIT // 2))
    k('s_cbranch_scc1 L_loop_%s' % name)

    vCa = v.alloc()
    k('v_and_b32 %s, 1, %s' % (vr(t1), vr(vWave)))
    k('v_mul_u32_u24 %s, %d, %s' % (vr(t1), 17 * 256, vr(t1)))
    k('v_lshl_add_u32 %s, %s, 2, %s' % (vr(vCa), vr(vLane), vr(t1)))
    k('v_cmp_eq_u32 vcc, 1, %s' % vr(vKh))
    k('s_and_saveexec_b64 %s, vcc' % sr(sTmp, 2))
    k('s_cbranch_execz L_skipw_%s' % name)
    for r in range(16):
        k('ds_write_b32 %s, %s offset:%d' % (vr(vCa), vr(vO + r), r * 256))
    k('ds_write_b32 %s, %s offset:%d' % (vr(vCa), vr(vM), 16 * 256))
    k.label('L_skipw_%s' % name)
    k('s_mov_b64 exec, %s' % sr(sTmp, 2))
    k('s_waitcnt lgkmcnt(0)')
    k('s_barrier')
    k('v_cmp_eq_u32 vcc, 0, %s' % vr(vKh))
    k('s_and_saveexec_b64 %s, vcc' % sr(sTmp, 2))
    k('s_cbranch_execz L_end_%s' % name)
    for r in range(16):
        k('ds_read_b32 %s, %s offset:%d' % (vr(vS + r), vr(vCa), r * 256))
    k('ds_read_b32 %s, %s offset:%d' % (vr(t3), vr(vCa), 16 * 256))
    k('v_max_f32 %s, %s, %s' % (vr(vMx), vr(vM), vr(t3)))
    k('v_sub_f32 %s, %s, %s' % (vr(t1), vr(vM), vr(vMx)))
    k('v_sub_f32 %s, %s, %s' % (vr(t2), vr(t3), vr(vMx)))
    k('v_mul_f32 %s, %s, %s' % (vr(t1), sr(sC), vr(t1)))
    k('v_mul_f32 %s, %s, %s' % (vr(t2), sr(sC), vr(t2)))
    k('v_exp_f32 %s, %s' % (vr(t1), vr(t1)))
    k('v_exp_f32 %s, %s' % (vr(t2), vr(t2)))
    for r in range(16):
        k('v_mul_f32 %s, %s, %s' % (vr(vO + r), vr(t1), vr(vO + r)))
        k('v_fmac_f32 %s, %s, %s' % (vr(vO + r), vr(t2), vr(vS + r)))
    k('v_mov_b32 %s, %s' % (vr(t1), vr(vO + 12)))
    k('v_mov_b32 %s, %s' % (vr(t2), vr(vO + 12)))
    k('v_permlane32_swap_b32 %s, %s' % (vr(t1), vr(t2)))
    k('v_rcp_f32 %s, %s' % (vr(t2), vr(t2)))
    vOoff = v.alloc()
    k('v_mul_u32_u24 %s, 896, %s' % (vr(vOoff), vr(vQrow)))
    k('s_mul_i32 %s, %s, 56' % (sr(sT), sr(sHead)))
    k('v_add_u32 %s, %s, %s' % (vr(vOoff), sr(sT), vr(vOoff)))
    k('v_lshl_add_u32 %s, %s, 3, %s' % (vr(vOoff), vr(vHH), vr(vOoff)))
    for r in range(16):
        k('v_mul_f32 %s, %s, %s' % (vr(vO + r), vr(t2), vr(vO + r)))
    for g in range(4):
        k('v_cvt_pk_bf16_f32 %s, %s, %s' % (vr(vP + 2 * g), vr(vO + 4 * g), vr(vO + 4 * g + 1)))
        k('v_cvt_pk_bf16_f32 %s, %s, %s' % (vr(vP + 2 * g + 1), vr(vO + 4 * g + 2), vr(vO + 4 * g + 3)))
    for g in range(3):
        k('buffer_store_dwordx2 %s, %s, %s, 0 offen offset:%d' % (vr(vP + 2 * g, 2), vr(vOoff), sr(srdO, 4), g * 16))
    k('s_and_b64 exec, exec, 0xffffffff' if False else 's_mov_b32 exec_hi, 0')
    k('buffer_store_dwordx2 %s, %s, %s, 0 offen offset:48' % (vr(vP + 6, 2), vr(vOoff), sr(srdO, 4)))
    k.label('L_end_%s' % name)
    k('s_endpgm')
    k.lds = max(lds_total, 2 * 17 * 256)
    k.nwg = nwg
    return k
```

```python
from gemm import RA, vr, sr, make_srd, f32bits, SLOT, M_ROWS
import gemm


def _mn(ctx):
    return ctx['vM'], ctx['vN']

gemm.lane_mn = _mn
_old_make_srd = gemm.make_srd


def make_srd(k, srd, tmp, src, size):
    sK = getattr(k, 'sK', None)
    if sK is None:
        return _old_make_srd(k, srd, tmp, src, size)
    slot, off = src
    p = sK + SLOT[slot] // 4
    if off:
        k('s_add_u32 %s, %s, 0x%x' % (sr(srd), sr(p), off))
        k('s_addc_u32 %s, %s, 0' % (sr(srd + 1), sr(p + 1)))
        k('s_and_b32 %s, %s, 0xffff' % (sr(srd + 1), sr(srd + 1)))
    else:
        k('s_mov_b32 %s, %s' % (sr(srd), sr(p)))
        k('s_and_b32 %s, %s, 0xffff' % (sr(srd + 1), sr(p + 1)))
    k('s_mov_b32 %s, 0x%x' % (sr(srd + 2), size))
    k('s_mov_b32 %s, 0x00020000' % sr(srd + 3))

gemm.make_srd = make_srd


def preload_kernargs(k, s):
    sK = s.alloc(20, 4)
    k('s_load_dwordx16 %s, s[0:1], 0' % sr(sK, 16))
    k('s_load_dwordx4 %s, s[0:1], 64' % sr(sK + 16, 4))
    k.sK = sK


def epi_resid3(ctx, res, out):
    k = ctx['k']; v = ctx['v']
    t1, t2, t3, t4 = ctx['t']
    N = ctx['N']
    assert ctx['TM'] == 1 and ctx['TN'] == 1
    a = ctx['acc'][0][0][0]
    vR = ctx['vRes']; vOff = ctx['vOffR']
    P = v.alloc(4, 4)
    for gp in range(2):
        for i in range(4):
            k('v_cvt_pk_bf16_f32 %s, %s, %s' % (vr(P + i), vr(a + 8 * gp + 2 * i), vr(a + 8 * gp + 2 * i + 1)))
        k('v_permlane32_swap_b32 %s, %s' % (vr(P), vr(P + 2)))
        k('v_permlane32_swap_b32 %s, %s' % (vr(P + 1), vr(P + 3)))
        r = vR + 4 * gp
        for i in range(4):
            k('v_lshlrev_b32 %s, 16, %s' % (vr(t2), vr(P + i)))
            k('v_and_b32 %s, 0xffff0000, %s' % (vr(t1), vr(P + i)))
            k('v_lshlrev_b32 %s, 16, %s' % (vr(t3), vr(r + i)))
            k('v_and_b32 %s, 0xffff0000, %s' % (vr(t4), vr(r + i)))
            k('v_add_f32 %s, %s, %s' % (vr(t2), vr(t2), vr(t3)))
            k('v_add_f32 %s, %s, %s' % (vr(t1), vr(t1), vr(t4)))
            k('v_cvt_pk_bf16_f32 %s, %s, %s' % (vr(r + i), vr(t2), vr(t1)))
        k('buffer_store_dwordx4 %s, %s, %s, 0 offen offset:%d' % (vr(r, 4), vr(vOff), sr(ctx['srdO'], 4), gp * 32))


def pre_resid3(ctx, res, out):
    k = ctx['k']; v = ctx['v']
    t1, t2, t3, t4 = ctx['t']
    N = ctx['N']
    make_srd(k, ctx['srdO'], ctx['sTmp'], out, M_ROWS * N * 2)
    make_srd(k, ctx['srdR'], ctx['sTmp'], res, M_ROWS * N * 2)
    vM, vN = _mn(ctx)
    vOff = v.alloc(); vR = v.alloc(8, 4)
    k('v_lshrrev_b32 %s, 5, %s' % (vr(t1), vr(ctx['vLane'])))
    k('v_lshl_add_u32 %s, %s, 2, %s' % (vr(t1), vr(t1), vr(vN)))
    k('v_mul_u32_u24 %s, %d, %s' % (vr(vOff), N * 2, vr(vM)))
    k('v_lshl_add_u32 %s, %s, 1, %s' % (vr(vOff), vr(t1), vr(vOff)))
    for gp in range(2):
        k('buffer_load_dwordx4 %s, %s, %s, 0 offen offset:%d' % (vr(vR + 4 * gp, 4), vr(vOff), sr(ctx['srdR'], 4), gp * 32))
    ctx['vRes'] = vR; ctx['vOffR'] = vOff

epi_resid3.pre = pre_resid3


def epi_swiglu3(ctx, out):
    k = ctx['k']; v = ctx['v']
    N = ctx['N']
    make_srd(k, ctx['srdO'], ctx['sTmp'], out, M_ROWS * N * 2)
    vM, vN = _mn(ctx)
    vOff = v.alloc()
    k('v_mul_u32_u24 %s, %d, %s' % (vr(vOff), N * 2, vr(vM)))
    k('v_lshl_add_u32 %s, %s, 1, %s' % (vr(vOff), vr(vN), vr(vOff)))
    TM, TN = ctx['TM'], ctx['TN']
    vOffs = [vOff]
    for mb in range(1, TM):
        r = v.alloc()
        k('v_add_u32 %s, %d, %s' % (vr(r), mb * 32 * N * 2, vr(vOff)))
        vOffs.append(r)
    cL = v.alloc(2, 2); c1 = v.alloc(2, 2)
    k('v_mov_b32 %s, 0x%08x' % (vr(cL), f32bits(-1.4426950408889634)))
    k('v_mov_b32 %s, 0x%08x' % (vr(cL + 1), f32bits(-1.4426950408889634)))
    k('v_mov_b32 %s, 1.0' % vr(c1)); k('v_mov_b32 %s, 1.0' % vr(c1 + 1))
    sets = []
    for i in range(2):
        sets.append((v.alloc(4, 2), v.alloc(4, 2), v.alloc(4, 2)))
    RR = [v.alloc(4, 4) for _ in range(2)]
    t1 = ctx['t'][0]
    k('v_lshrrev_b32 %s, 5, %s' % (vr(t1), vr(ctx['vLane'])))
    k('v_lshlrev_b32 %s, 3, %s' % (vr(t1), vr(t1)))
    for mb in range(TM):
        k('v_add_u32 %s, %s, %s' % (vr(vOffs[mb]), vr(vOffs[mb]), vr(t1)))
    it = 0
    for nb in range(TN):
        for mb in range(TM):
            ag = ctx['acc'][0][nb][mb]
            au = ctx['acc'][1][nb][mb]
            for g in range(4):
                G, U, T = sets[it & 1]
                R4 = RR[(it >> 1) & 1]
                R = R4 + 2 * (g & 1)
                it += 1
                if ctx['agpr']:
                    for e in range(4):
                        k('v_accvgpr_read_b32 %s, a%d' % (vr(G + e), ag + 4 * g + e))
                    for e in range(4):
                        k('v_accvgpr_read_b32 %s, a%d' % (vr(U + e), au + 4 * g + e))
                else:
                    G = ag + 4 * g; U = au + 4 * g
                for h in range(2):
                    k('v_pk_mul_f32 %s, %s, %s' % (vr(T + 2 * h, 2), vr(G + 2 * h, 2), vr(cL, 2)))
                for e in range(4):
                    k('v_exp_f32 %s, %s' % (vr(T + e), vr(T + e)))
                for h in range(2):
                    k('v_pk_add_f32 %s, %s, %s' % (vr(T + 2 * h, 2), vr(T + 2 * h, 2), vr(c1, 2)))
                for h in range(2):
                    k('v_pk_mul_f32 %s, %s, %s' % (vr(U + 2 * h, 2), vr(G + 2 * h, 2), vr(U + 2 * h, 2)))
                for e in range(4):
                    k('v_rcp_f32 %s, %s' % (vr(T + e), vr(T + e)))
                for h in range(2):
                    k('v_pk_mul_f32 %s, %s, %s' % (vr(U + 2 * h, 2), vr(U + 2 * h, 2), vr(T + 2 * h, 2)))
                for h in range(2):
                    k('v_cvt_pk_bf16_f32 %s, %s, %s' % (vr(R + h), vr(U + 2 * h), vr(U + 2 * h + 1)))
                if g & 1:
                    k('v_permlane32_swap_b32 %s, %s' % (vr(R4), vr(R4 + 2)))
                    k('v_permlane32_swap_b32 %s, %s' % (vr(R4 + 1), vr(R4 + 3)))
                    k('buffer_store_dwordx4 %s, %s, %s, 0 offen offset:%d' %
                      (vr(R4, 4), vr(vOffs[mb]), sr(ctx['srdO'], 4), nb * 64 + (g - 1) * 16))
```

```python
from asmlib import Kernel

M_ROWS = 2048


class RA:
    def __init__(self, start, limit):
        self.n = start
        self.limit = limit

    def alloc(self, cnt=1, align=1):
        self.n = (self.n + align - 1) // align * align
        r = self.n
        self.n += cnt
        assert self.n <= self.limit, 'out of registers'
        return r


def vr(b, n=1):
    return 'v%d' % b if n == 1 else 'v[%d:%d]' % (b, b + n - 1)


def sr(b, n=1):
    return 's%d' % b if n == 1 else 's[%d:%d]' % (b, b + n - 1)


SLOT = {'A_x': 0, 'A_wqkv': 8, 'A_wo': 16, 'B_x': 24, 'B_w1': 32, 'B_w3': 40, 'B_w2': 48,
        'out': 56, 'dbg': 64, 'ws': 72}


def make_srd(k, srd, tmp, src, size):
    slot, off = src
    k('s_load_dwordx2 %s, s[0:1], %d' % (sr(tmp, 2), SLOT[slot]))
    k('s_waitcnt lgkmcnt(0)')
    if off:
        k('s_add_u32 %s, %s, 0x%x' % (sr(srd), sr(tmp), off))
        k('s_addc_u32 %s, %s, 0' % (sr(srd + 1), sr(tmp + 1)))
    else:
        k('s_mov_b32 %s, %s' % (sr(srd), sr(tmp)))
        k('s_mov_b32 %s, %s' % (sr(srd + 1), sr(tmp + 1)))
    k('s_and_b32 %s, %s, 0xffff' % (sr(srd + 1), sr(srd + 1)))
    k('s_mov_b32 %s, 0x%x' % (sr(srd + 2), size))
    k('s_mov_b32 %s, 0x00020000' % sr(srd + 3))


def gemm_kernel(name, K, N, BM, BN, A, Ws, epi, ln=False, epi_args=None):
    k = Kernel(name)
    BK = 64
    NC = K // BK
    NW = len(Ws)
    NTM = M_ROWS // BM
    NTN = N // BN
    nwg = NTM * NTN
    lda = K * 2
    ldw = N * 2
    PA = BK * 2 + 16
    PW = BN * 2 + (64 if (BN * 2) % 256 == 0 or (BN * 2) % 256 == 128 else 0)
    assert PW % 256 in (64, 192), PW
    szA = BM * PA
    szW = BK * PW
    offW = 2 * szA
    lds_total = offW + 2 * NW * szW
    TM = BM // 64
    TN = BN // 64
    TPR = 256 // BM
    PPT = 8 // TPR
    WPT = BN * 2 // 16 * BK // 256
    WTPR = BN * 2 // 16 // WPT
    WTPR = 256 // BK
    WPT = (BN * 2 // 16) // WTPR

    s = RA(4, 100)
    v = RA(1, 256)
    sTmp = s.alloc(2, 2)
    srdA = s.alloc(4, 4)
    srdW = [s.alloc(4, 4) for _ in range(NW)]
    srdO = s.alloc(4, 4)
    srdR = s.alloc(4, 4)
    sTm = s.alloc(); sTn = s.alloc(); sWoff = s.alloc(); sT2 = s.alloc(); sT3 = s.alloc()

    k('s_cmp_ge_u32 s2, %d' % nwg)
    k('s_cbranch_scc1 L_end_%s' % name)
    k('s_mov_b32 %s, 0x%x' % (sT2, 0) if False else 's_nop 0')
    magic = (1 << 32) // NTN + 1
    k('s_mul_hi_u32 %s, s2, 0x%x' % (sr(sTm), magic))
    k('s_mul_i32 %s, %s, %d' % (sr(sT2), sr(sTm), NTN))
    k('s_sub_u32 %s, s2, %s' % (sr(sTn), sr(sT2)))

    make_srd(k, srdA, sTmp, A, M_ROWS * lda)
    for i in range(NW):
        make_srd(k, srdW[i], sTmp, Ws[i], K * ldw)

    vLane = v.alloc(); vT = v.alloc(); vWave = v.alloc()
    k('v_and_b32 %s, 63, v0' % vr(vLane))
    k('v_lshrrev_b32 %s, 6, v0' % vr(vWave))
    vAg = v.alloc(); vAst = v.alloc()
    t1 = v.alloc(); t2 = v.alloc(); t3 = v.alloc(); t4 = v.alloc()
    sh = {4: 2, 2: 1}[TPR]
    k('v_lshrrev_b32 %s, %d, v0' % (vr(t1), sh))
    k('v_and_b32 %s, %d, v0' % (vr(t2), TPR - 1))
    k('v_lshlrev_b32 %s, 4, %s' % (vr(t2), vr(t2)))
    k('s_mul_i32 %s, %s, %d' % (sr(sT2), sr(sTm), BM * lda))
    k('v_mul_u32_u24 %s, %d, %s' % (vr(vAg), lda, vr(t1)))
    k('v_add3_u32 %s, %s, %s, %s' % (vr(vAg), vr(vAg), vr(t2), sr(sT2)))
    k('v_mul_u32_u24 %s, %d, %s' % (vr(vAst), PA, vr(t1)))
    k('v_add_u32 %s, %s, %s' % (vr(vAst), vr(vAst), vr(t2)))
    vWg = v.alloc(); vWst = v.alloc()
    k('v_lshrrev_b32 %s, 2, v0' % vr(t1))
    k('v_and_b32 %s, 3, v0' % vr(t2))
    k('v_lshlrev_b32 %s, 4, %s' % (vr(t2), vr(t2)))
    k('s_mul_i32 %s, %s, %d' % (sr(sT2), sr(sTn), BN * 2))
    k('v_mul_u32_u24 %s, %d, %s' % (vr(vWg), ldw, vr(t1)))
    k('v_add3_u32 %s, %s, %s, %s' % (vr(vWg), vr(vWg), vr(t2), sr(sT2)))
    k('v_mul_u32_u24 %s, %d, %s' % (vr(vWst), PW, vr(t1)))
    k('v_add_u32 %s, %s, %s' % (vr(vWst), vr(vWst), vr(t2)))
    k('v_add_u32 %s, %d, %s' % (vr(vWst), offW, vr(vWst)))
    vXa = v.alloc(); vWa = v.alloc()
    k('v_lshrrev_b32 %s, 1, %s' % (vr(t1), vr(vWave)))
    k('v_and_b32 %s, 1, %s' % (vr(t2), vr(vWave)))
    k('v_and_b32 %s, 31, %s' % (vr(t3), vr(vLane)))
    k('v_mul_u32_u24 %s, %d, %s' % (vr(t1), BM // 2, vr(t1)))
    k('v_add_u32 %s, %s, %s' % (vr(t3), vr(t3), vr(t1)))
    k('v_mul_u32_u24 %s, %d, %s' % (vr(vXa), PA, vr(t3)))
    k('v_lshrrev_b32 %s, 5, %s' % (vr(t4), vr(vLane)))
    k('v_lshlrev_b32 %s, 4, %s' % (vr(t4), vr(t4)))
    k('v_add_u32 %s, %s, %s' % (vr(vXa), vr(vXa), vr(t4)))
    k('v_lshrrev_b32 %s, 5, %s' % (vr(t1), vr(vLane)))
    k('v_lshlrev_b32 %s, 3, %s' % (vr(t1), vr(t1)))
    k('v_bfe_u32 %s, %s, 2, 2' % (vr(t3), vr(vLane)))
    k('v_add_u32 %s, %s, %s' % (vr(t1), vr(t1), vr(t3)))
    k('v_mul_u32_u24 %s, %d, %s' % (vr(vWa), PW, vr(t1)))
    k('v_bfe_u32 %s, %s, 4, 1' % (vr(t3), vr(vLane)))
    k('v_lshlrev_b32 %s, 5, %s' % (vr(t3), vr(t3)))
    k('v_and_b32 %s, 3, %s' % (vr(t4), vr(vLane)))
    k('v_lshlrev_b32 %s, 3, %s' % (vr(t4), vr(t4)))
    k('v_add3_u32 %s, %s, %s, %s' % (vr(vWa), vr(vWa), vr(t3), vr(t4)))
    k('v_mul_u32_u24 %s, %d, %s' % (vr(t2), BN, vr(t2)))
    k('v_add_u32 %s, %s, %s' % (vr(vWa), vr(vWa), vr(t2)))
    k('v_add_u32 %s, %d, %s' % (vr(vWa), offW, vr(vWa)))

    if ln:
        NPIECE = K * 2 // 16 // TPR
        vAd = v.alloc(4 * NPIECE, 4)
    else:
        vAd = v.alloc(4 * PPT, 4)
    vWd = [v.alloc(4 * WPT, 4) for _ in range(NW)]
    vXf = v.alloc(4 * TM, 4)
    vWf = [v.alloc(4 * TN, 4) for _ in range(NW)]
    acc = [[[v.alloc(16, 4) for _ in range(TM)] for _ in range(TN)] for _ in range(NW)]
    for w in range(NW):
        for nb in range(TN):
            for mb in range(TM):
                for r in range(16):
                    k('v_mov_b32 %s, 0' % vr(acc[w][nb][mb] + r))

    def load_A(c):
        for j in range(PPT):
            if ln:
                continue
            k('buffer_load_dwordx4 %s, %s, %s, 0 offen offset:%d' %
              (vr(vAd + 4 * j, 4), vr(vAg), sr(srdA, 4), c * 128 + j * TPR * 16))

    def load_W(c):
        k('s_mov_b32 %s, %d' % (sr(sWoff), c * BK * ldw))
        for w in range(NW):
            for j in range(WPT):
                k('buffer_load_dwordx4 %s, %s, %s, %s offen offset:%d' %
                  (vr(vWd[w] + 4 * j, 4), vr(vWg), sr(srdW[w], 4), sr(sWoff), j * 64))

    def store_lds(c):
        p = c & 1
        for j in range(PPT):
            src = vAd + 4 * (j if not ln else (c * PPT + j))
            k('ds_write_b128 %s, %s offset:%d' % (vr(vAst), vr(src, 4), p * szA + j * TPR * 16))
        for w in range(NW):
            for j in range(WPT):
                k('ds_write_b128 %s, %s offset:%d' %
                  (vr(vWst), vr(vWd[w] + 4 * j, 4), (p * NW + w) * szW + j * 64))

    if ln:
        for j in range(NPIECE):
            c, jj = divmod(j, PPT)
            k('buffer_load_dwordx4 %s, %s, %s, 0 offen offset:%d' %
              (vr(vAd + 4 * j, 4), vr(vAg), sr(srdA, 4), c * 128 + jj * TPR * 16))
        load_W(0)
        vS = v.alloc(); vQ = v.alloc(); vOnes = v.alloc()
        k('v_mov_b32 %s, 0' % vr(vS)); k('v_mov_b32 %s, 0' % vr(vQ))
        k('v_mov_b32 %s, 0x3f803f80' % vr(vOnes))
        for j in range(4 * NPIECE):
            k('v_dot2_f32_bf16 %s, %s, %s, %s' % (vr(vS), vr(vAd + j), vr(vOnes), vr(vS)))
            k('v_dot2_f32_bf16 %s, %s, %s, %s' % (vr(vQ), vr(vAd + j), vr(vAd + j), vr(vQ)))
        perms = ['[1,0,3,2]', '[2,3,0,1]'] if TPR == 4 else ['[1,0,3,2]']
        for pm in perms:
            k('v_add_f32_dpp %s, %s, %s quad_perm:%s row_mask:0xf bank_mask:0xf' % (vr(t1), vr(vS), vr(vS), pm))
            k('v_add_f32_dpp %s, %s, %s quad_perm:%s row_mask:0xf bank_mask:0xf' % (vr(t2), vr(vQ), vr(vQ), pm))
            k('v_mov_b32 %s, %s' % (vr(vS), vr(t1)))
            k('v_mov_b32 %s, %s' % (vr(vQ), vr(t2)))
        k('v_mul_f32 %s, %r, %s' % (vr(vS), 1.0 / K, vr(vS)) if False else
          'v_mul_f32 %s, 0x%08x, %s' % (vr(vS), f32bits(1.0 / K), vr(vS)))
        k('v_mul_f32 %s, 0x%08x, %s' % (vr(vQ), f32bits(1.0 / K), vr(vQ)))
        k('v_fma_f32 %s, -%s, %s, %s' % (vr(vQ), vr(vS), vr(vS), vr(vQ)))
        k('v_max_f32 %s, 0, %s' % (vr(vQ), vr(vQ)))
        k('v_cvt_pk_bf16_f32 %s, %s, %s' % (vr(t1), vr(vS), vr(vQ)))
        k('v_lshlrev_b32 %s, 16, %s' % (vr(vS), vr(t1)))
        k('v_and_b32 %s, 0xffff0000, %s' % (vr(vQ), vr(t1)))
        k('v_add_f32 %s, 0x%08x, %s' % (vr(vQ), f32bits(1e-5), vr(vQ)))
        k('v_cvt_pk_bf16_f32 %s, %s, %s' % (vr(t1), vr(vQ), vr(vQ)))
        k('v_lshlrev_b32 %s, 16, %s' % (vr(vQ), vr(t1)))
        k('v_sqrt_f32 %s, %s' % (vr(vQ), vr(vQ)))
        k('v_cvt_pk_bf16_f32 %s, %s, %s' % (vr(t1), vr(vQ), vr(vQ)))
        k('v_lshlrev_b32 %s, 16, %s' % (vr(vQ), vr(t1)))
        k('v_rcp_f32 %s, %s' % (vr(vQ), vr(vQ)))
        for j in range(4 * NPIECE):
            x = vAd + j
            k('v_lshlrev_b32 %s, 16, %s' % (vr(t1), vr(x)))
            k('v_and_b32 %s, 0xffff0000, %s' % (vr(t2), vr(x)))
            k('v_sub_f32 %s, %s, %s' % (vr(t1), vr(t1), vr(vS)))
            k('v_sub_f32 %s, %s, %s' % (vr(t2), vr(t2), vr(vS)))
            k('v_cvt_pk_bf16_f32 %s, %s, %s' % (vr(t3), vr(t1), vr(t2)))
            k('v_lshlrev_b32 %s, 16, %s' % (vr(t1), vr(t3)))
            k('v_and_b32 %s, 0xffff0000, %s' % (vr(t2), vr(t3)))
            k('v_mul_f32 %s, %s, %s' % (vr(t1), vr(t1), vr(vQ)))
            k('v_mul_f32 %s, %s, %s' % (vr(t2), vr(t2), vr(vQ)))
            k('v_cvt_pk_bf16_f32 %s, %s, %s' % (vr(x), vr(t1), vr(t2)))
    else:
        load_A(0)
        load_W(0)

    store_lds(0)
    if NC > 1:
        load_A(1); load_W(1)
    k('s_waitcnt lgkmcnt(0)')
    k('s_barrier')
    for c in range(NC):
        p = c & 1
        for ks in range(BK // 16):
            for mb in range(TM):
                k('ds_read_b128 %s, %s offset:%d' %
                  (vr(vXf + 4 * mb, 4), vr(vXa), p * szA + mb * 32 * PA + ks * 32))
            for w in range(NW):
                for nb in range(TN):
                    base = (p * NW + w) * szW + ks * 16 * PW + nb * 64
                    k('ds_read_b64_tr_b16 %s, %s offset:%d' % (vr(vWf[w] + 4 * nb, 2), vr(vWa), base))
                    k('ds_read_b64_tr_b16 %s, %s offset:%d' % (vr(vWf[w] + 4 * nb + 2, 2), vr(vWa), base + 4 * PW))
            for w in range(NW):
                for nb in range(TN):
                    for mb in range(TM):
                        a = acc[w][nb][mb]
                        k('v_mfma_f32_32x32x16_bf16 %s, %s, %s, %s' %
                          (vr(a, 16), vr(vWf[w] + 4 * nb, 4), vr(vXf + 4 * mb, 4), vr(a, 16)))
        if c + 1 < NC:
            store_lds(c + 1)
            if c + 2 < NC:
                load_A(c + 2); load_W(c + 2)
            k('s_waitcnt lgkmcnt(0)')
            k('s_barrier')

    ctx = dict(k=k, v=v, s=s, acc=acc, TM=TM, TN=TN, BM=BM, BN=BN, vLane=vLane, vWave=vWave,
               sTm=sTm, sTn=sTn, sTmp=sTmp, srdO=srdO, srdR=srdR, t=(t1, t2, t3, t4), sT2=sT2, sT3=sT3,
               N=N, name=name)
    epi(ctx, **(epi_args or {}))
    k.label('L_end_%s' % name)
    k('s_endpgm')
    k.lds = lds_total
    k.nwg = nwg
    return k


def f32bits(x):
    import struct
    return struct.unpack('<I', struct.pack('<f', x))[0]


def lane_mn(ctx):
    k = ctx['k']; v = ctx['v']
    t1, t2, t3, t4 = ctx['t']
    vM = v.alloc(); vN = v.alloc()
    BM = ctx['BM']; BN = ctx['BN']
    k('v_lshrrev_b32 %s, 1, %s' % (vr(t1), vr(ctx['vWave'])))
    k('v_mul_u32_u24 %s, %d, %s' % (vr(t1), BM // 2, vr(t1)))
    k('v_and_b32 %s, 31, %s' % (vr(t2), vr(ctx['vLane'])))
    k('s_mul_i32 %s, %s, %d' % (sr(ctx['sT2']), sr(ctx['sTm']), BM))
    k('v_add3_u32 %s, %s, %s, %s' % (vr(vM), vr(t1), vr(t2), sr(ctx['sT2'])))
    k('v_and_b32 %s, 1, %s' % (vr(t1), vr(ctx['vWave'])))
    k('v_mul_u32_u24 %s, %d, %s' % (vr(t1), BN // 2, vr(t1)))
    k('v_lshrrev_b32 %s, 5, %s' % (vr(t2), vr(ctx['vLane'])))
    k('v_lshlrev_b32 %s, 2, %s' % (vr(t2), vr(t2)))
    k('s_mul_i32 %s, %s, %d' % (sr(ctx['sT2']), sr(ctx['sTn']), BN))
    k('v_add3_u32 %s, %s, %s, %s' % (vr(vN), vr(t1), vr(t2), sr(ctx['sT2'])))
    return vM, vN


def epi_resid(ctx, res, out):
    k = ctx['k']; v = ctx['v']
    t1, t2, t3, t4 = ctx['t']
    N = ctx['N']
    make_srd(k, ctx['srdO'], ctx['sTmp'], out, M_ROWS * N * 2)
    make_srd(k, ctx['srdR'], ctx['sTmp'], res, M_ROWS * N * 2)
    vM, vN = lane_mn(ctx)
    vOff = v.alloc()
    k('v_mul_u32_u24 %s, %d, %s' % (vr(vOff), N * 2, vr(vM)))
    k('v_lshl_add_u32 %s, %s, 1, %s' % (vr(vOff), vr(vN), vr(vOff)))
    TM, TN = ctx['TM'], ctx['TN']
    vR = v.alloc(2 * 4 * TM * TN, 2)
    idx = 0
    for nb in range(TN):
        for mb in range(TM):
            for g in range(4):
                k('buffer_load_dwordx2 %s, %s, %s, 0 offen offset:%d' %
                  (vr(vR + 2 * idx, 2), vr(vOff), sr(ctx['srdR'], 4), mb * 32 * N * 2 + nb * 64 + g * 16))
                idx += 1
    idx = 0
    for nb in range(TN):
        for mb in range(TM):
            a = ctx['acc'][0][nb][mb]
            for g in range(4):
                r = vR + 2 * idx
                for hpair in range(2):
                    a0 = a + 4 * g + 2 * hpair
                    k('v_cvt_pk_bf16_f32 %s, %s, %s' % (vr(t1), vr(a0), vr(a0 + 1)))
                    k('v_lshlrev_b32 %s, 16, %s' % (vr(t2), vr(t1)))
                    k('v_and_b32 %s, 0xffff0000, %s' % (vr(t1), vr(t1)))
                    k('v_lshlrev_b32 %s, 16, %s' % (vr(t3), vr(r + hpair)))
                    k('v_and_b32 %s, 0xffff0000, %s' % (vr(t4), vr(r + hpair)))
                    k('v_add_f32 %s, %s, %s' % (vr(t2), vr(t2), vr(t3)))
                    k('v_add_f32 %s, %s, %s' % (vr(t1), vr(t1), vr(t4)))
                    k('v_cvt_pk_bf16_f32 %s, %s, %s' % (vr(r + hpair), vr(t2), vr(t1)))
                k('buffer_store_dwordx2 %s, %s, %s, 0 offen offset:%d' %
                  (vr(r, 2), vr(vOff), sr(ctx['srdO'], 4), mb * 32 * N * 2 + nb * 64 + g * 16))
                idx += 1


def epi_plain(ctx, out):
    k = ctx['k']; v = ctx['v']
    N = ctx['N']
    make_srd(k, ctx['srdO'], ctx['sTmp'], out, M_ROWS * N * 2)
    vM, vN = lane_mn(ctx)
    vOff = v.alloc()
    k('v_mul_u32_u24 %s, %d, %s' % (vr(vOff), N * 2, vr(vM)))
    k('v_lshl_add_u32 %s, %s, 1, %s' % (vr(vOff), vr(vN), vr(vOff)))
    TM, TN = ctx['TM'], ctx['TN']
    vR = v.alloc(2, 2)
    for nb in range(TN):
        for mb in range(TM):
            a = ctx['acc'][0][nb][mb]
            for g in range(4):
                k('v_cvt_pk_bf16_f32 %s, %s, %s' % (vr(vR), vr(a + 4 * g), vr(a + 4 * g + 1)))
                k('v_cvt_pk_bf16_f32 %s, %s, %s' % (vr(vR + 1), vr(a + 4 * g + 2), vr(a + 4 * g + 3)))
                k('buffer_store_dwordx2 %s, %s, %s, 0 offen offset:%d' %
                  (vr(vR, 2), vr(vOff), sr(ctx['srdO'], 4), mb * 32 * N * 2 + nb * 64 + g * 16))


def epi_swiglu(ctx, out):
    k = ctx['k']; v = ctx['v']
    t1, t2, t3, t4 = ctx['t']
    N = ctx['N']
    make_srd(k, ctx['srdO'], ctx['sTmp'], out, M_ROWS * N * 2)
    vM, vN = lane_mn(ctx)
    vOff = v.alloc()
    k('v_mul_u32_u24 %s, %d, %s' % (vr(vOff), N * 2, vr(vM)))
    k('v_lshl_add_u32 %s, %s, 1, %s' % (vr(vOff), vr(vN), vr(vOff)))
    TM, TN = ctx['TM'], ctx['TN']
    vR = v.alloc(2, 2)
    vG = v.alloc(4, 2)
    for nb in range(TN):
        for mb in range(TM):
            ag = ctx['acc'][0][nb][mb]
            au = ctx['acc'][1][nb][mb]
            for g in range(4):
                for hp in range(2):
                    for e in range(2):
                        gi = ag + 4 * g + 2 * hp + e
                        ui = au + 4 * g + 2 * hp + e
                        k('v_mul_f32 %s, 0x%08x, %s' % (vr(t2), f32bits(-1.4426950408889634), vr(gi)))
                        k('v_exp_f32 %s, %s' % (vr(t2), vr(t2)))
                        k('v_add_f32 %s, 1.0, %s' % (vr(t2), vr(t2)))
                        k('v_rcp_f32 %s, %s' % (vr(t2), vr(t2)))
                        k('v_mul_f32 %s, %s, %s' % (vr(vG + e), vr(gi), vr(t2)))
                        k('v_mul_f32 %s, %s, %s' % (vr(vG + e), vr(vG + e), vr(ui)))
                    k('v_cvt_pk_bf16_f32 %s, %s, %s' % (vr(vR + hp), vr(vG), vr(vG + 1)))
                k('buffer_store_dwordx2 %s, %s, %s, 0 offen offset:%d' %
                  (vr(vR, 2), vr(vOff), sr(ctx['srdO'], 4), mb * 32 * N * 2 + nb * 64 + g * 16))


def epi_qkv(ctx, qkv):
    k = ctx['k']; v = ctx['v']
    t1, t2, t3, t4 = ctx['t']
    make_srd(k, ctx['srdO'], ctx['sTmp'], qkv, 3 * 16 * 2048 * 64)
    vM, vN = lane_mn(ctx)
    TM, TN = ctx['TM'], ctx['TN']
    vR = v.alloc(2, 2)
    vOff = v.alloc()
    for nb in range(TN):
        for g in range(4):
            k('v_add_u32 %s, %d, %s' % (vr(t1), nb * 32 + 8 * g, vr(vN)))
            k('v_lshrrev_b32 %s, 2, %s' % (vr(t1), vr(t1)))
            k('v_mul_u32_u24 %s, 0x%x, %s' % (vr(t2), 9363, vr(t1)))
            k('v_lshrrev_b32 %s, 16, %s' % (vr(t2), vr(t2)))
            k('v_mul_u32_u24 %s, 7, %s' % (vr(t3), vr(t2)))
            k('v_sub_u32 %s, %s, %s' % (vr(t3), vr(t1), vr(t3)))
            k('v_lshlrev_b32 %s, 17, %s' % (vr(t2), vr(t2)))
            k('v_lshl_add_u32 %s, %s, 3, %s' % (vr(t2), vr(t3), vr(t2)))
            k('v_lshl_add_u32 %s, %s, 6, %s' % (vr(vOff), vr(vM), vr(t2)))
            for mb in range(TM):
                a = ctx['acc'][0][nb][mb]
                k('v_cvt_pk_bf16_f32 %s, %s, %s' % (vr(vR), vr(a + 4 * g), vr(a + 4 * g + 1)))
                k('v_cvt_pk_bf16_f32 %s, %s, %s' % (vr(vR + 1), vr(a + 4 * g + 2), vr(a + 4 * g + 3)))
                k('buffer_store_dwordx2 %s, %s, %s, 0 offen offset:%d' %
                  (vr(vR, 2), vr(vOff), sr(ctx['srdO'], 4), mb * 32 * 64))
```

```python
from asmlib import Kernel
from gemm import RA, vr, sr, make_srd, f32bits, SLOT, M_ROWS


def gemm_kernel(name, K, N, BM, BN, A, Ws, epi, ln=False, epi_args=None, depth=3, stamp_wg=None, abl='', alg=None):
    k = Kernel(name)
    BK = 64
    NC = K // BK
    NW = len(Ws)
    NTM = M_ROWS // BM
    NTN = N // BN
    nwg = NTM * NTN
    lda = K * 2
    ldw = N * 2
    PA = BK * 2 + 16
    PW = BN * 2 + 64 if (BN * 2) % 128 == 0 else BN * 2
    assert PW % 256 in (64, 192), PW
    szA = BM * PA
    szW = BK * PW
    offW = 2 * szA
    lds_total = offW + 2 * NW * szW
    TM = BM // 64
    TN = BN // 64
    APT = BM // 32
    WLPR = BN * 2 // 16
    WROWS = 256 // WLPR
    WPT = BK // WROWS
    D = min(depth, NC)

    s = RA(4, 100)
    v = RA(1, 256)
    sTmp = s.alloc(2, 2)
    srdA = s.alloc(4, 4)
    srdW = [s.alloc(4, 4) for _ in range(NW)]
    srdO = s.alloc(4, 4)
    srdR = s.alloc(4, 4)
    sTm = s.alloc(); sTn = s.alloc(); sWoff = s.alloc(); sT2 = s.alloc(); sT3 = s.alloc()
    sArow = [s.alloc() for _ in range(APT)]

    stamps = []
    def stamp():
        if stamp_wg is None:
            return
        r = s.alloc(2, 2)
        stamps.append(r)
        k('s_memtime %s' % sr(r, 2))
    stamp()
    k('s_cmp_ge_u32 s2, %d' % nwg)
    k('s_cbranch_scc1 L_end_%s' % name)
    assert NTM % 8 == 0
    magic = (1 << 32) // NTN + 1
    k('s_lshr_b32 %s, s2, 3' % sr(sT3))
    k('s_mul_hi_u32 %s, %s, 0x%x' % (sr(sTm), sr(sT3), magic))
    k('s_mul_i32 %s, %s, %d' % (sr(sT2), sr(sTm), NTN))
    k('s_sub_u32 %s, %s, %s' % (sr(sTn), sr(sT3), sr(sT2)))
    k('s_lshl_b32 %s, %s, 3' % (sr(sTm), sr(sTm)))
    k('s_and_b32 %s, s2, 7' % sr(sT2))
    k('s_add_u32 %s, %s, %s' % (sr(sTm), sr(sTm), sr(sT2)))

    make_srd(k, srdA, sTmp, A, M_ROWS * lda)
    for i in range(NW):
        make_srd(k, srdW[i], sTmp, Ws[i], K * ldw)

    for j in range(APT):
        k('s_mov_b32 %s, %d' % (sr(sArow[j]), j * 32 * lda))
    vLane = v.alloc(); vWave = v.alloc()
    k('v_and_b32 %s, 63, v0' % vr(vLane))
    k('v_lshrrev_b32 %s, 6, v0' % vr(vWave))
    vAg = v.alloc(); vAst = v.alloc()
    t1 = v.alloc(); t2 = v.alloc(); t3 = v.alloc(); t4 = v.alloc()
    k('v_lshrrev_b32 %s, 3, v0' % vr(t1))
    k('v_and_b32 %s, 7, v0' % vr(t2))
    k('v_lshlrev_b32 %s, 4, %s' % (vr(t2), vr(t2)))
    k('s_mul_i32 %s, %s, %d' % (sr(sT2), sr(sTm), BM * lda))
    k('v_mul_u32_u24 %s, %d, %s' % (vr(vAg), lda, vr(t1)))
    k('v_add3_u32 %s, %s, %s, %s' % (vr(vAg), vr(vAg), vr(t2), sr(sT2)))
    k('v_mul_u32_u24 %s, %d, %s' % (vr(vAst), PA, vr(t1)))
    k('v_add_u32 %s, %s, %s' % (vr(vAst), vr(vAst), vr(t2)))
    vWg = v.alloc(); vWst = v.alloc()
    sh = {8: 3, 16: 4, 24: 99}[WLPR]
    k('v_lshrrev_b32 %s, %d, v0' % (vr(t1), sh))
    k('v_and_b32 %s, %d, v0' % (vr(t2), WLPR - 1))
    k('v_lshlrev_b32 %s, 4, %s' % (vr(t2), vr(t2)))
    k('s_mul_i32 %s, %s, %d' % (sr(sT2), sr(sTn), BN * 2))
    k('v_mul_u32_u24 %s, %d, %s' % (vr(vWg), ldw, vr(t1)))
    k('v_add3_u32 %s, %s, %s, %s' % (vr(vWg), vr(vWg), vr(t2), sr(sT2)))
    k('v_mul_u32_u24 %s, %d, %s' % (vr(vWst), PW, vr(t1)))
    k('v_add_u32 %s, %s, %s' % (vr(vWst), vr(vWst), vr(t2)))
    k('v_add_u32 %s, %d, %s' % (vr(vWst), offW, vr(vWst)))
    vXa = v.alloc(); vWa = v.alloc()
    k('v_lshrrev_b32 %s, 1, %s' % (vr(t1), vr(vWave)))
    k('v_and_b32 %s, 1, %s' % (vr(t2), vr(vWave)))
    k('v_and_b32 %s, 31, %s' % (vr(t3), vr(vLane)))
    k('v_mul_u32_u24 %s, %d, %s' % (vr(t1), BM // 2, vr(t1)))
    k('v_add_u32 %s, %s, %s' % (vr(t3), vr(t3), vr(t1)))
    k('v_mul_u32_u24 %s, %d, %s' % (vr(vXa), PA, vr(t3)))
    k('v_lshrrev_b32 %s, 5, %s' % (vr(t4), vr(vLane)))
    k('v_lshlrev_b32 %s, 4, %s' % (vr(t4), vr(t4)))
    k('v_add_u32 %s, %s, %s' % (vr(vXa), vr(vXa), vr(t4)))
    k('v_lshrrev_b32 %s, 5, %s' % (vr(t1), vr(vLane)))
    k('v_lshlrev_b32 %s, 3, %s' % (vr(t1), vr(t1)))
    k('v_bfe_u32 %s, %s, 2, 2' % (vr(t3), vr(vLane)))
    k('v_add_u32 %s, %s, %s' % (vr(t1), vr(t1), vr(t3)))
    k('v_mul_u32_u24 %s, %d, %s' % (vr(vWa), PW, vr(t1)))
    k('v_bfe_u32 %s, %s, 4, 1' % (vr(t3), vr(vLane)))
    k('v_lshlrev_b32 %s, 5, %s' % (vr(t3), vr(t3)))
    k('v_and_b32 %s, 3, %s' % (vr(t4), vr(vLane)))
    k('v_lshlrev_b32 %s, 3, %s' % (vr(t4), vr(t4)))
    k('v_add3_u32 %s, %s, %s, %s' % (vr(vWa), vr(vWa), vr(t3), vr(t4)))
    k('v_mul_u32_u24 %s, %d, %s' % (vr(t2), BN, vr(t2)))
    k('v_add_u32 %s, %s, %s' % (vr(vWa), vr(vWa), vr(t2)))
    k('v_add_u32 %s, %d, %s' % (vr(vWa), offW, vr(vWa)))

    vWa1 = v.alloc(); vWst1 = v.alloc()
    k('v_add_u32 %s, %d, %s' % (vr(vWa1), NW * szW, vr(vWa)))
    k('v_add_u32 %s, %d, %s' % (vr(vWst1), NW * szW, vr(vWst)))
    if ln:
        vAd = v.alloc(4 * APT * NC, 4)
    else:
        vAd = v.alloc(4 * APT * D, 4)
    vWd = [v.alloc(4 * WPT * D, 4) for _ in range(NW)]
    vXf = v.alloc(16 * TM, 4)
    vWf = [v.alloc(16 * TN, 4) for _ in range(NW)]
    acc = [[[v.alloc(16, 4) for _ in range(TM)] for _ in range(TN)] for _ in range(NW)]

    if alg:
        aS = v.alloc(APT); aQ = v.alloc(APT); aOnes = v.alloc()
        k('v_mov_b32 %s, 0x3f803f80' % vr(aOnes))
        for j in range(APT):
            k('v_mov_b32 %s, 0' % vr(aS + j)); k('v_mov_b32 %s, 0' % vr(aQ + j))

    def load_A(c):
        if ln or ('noload' in abl and c >= D):
            return
        for j in range(APT):
            k('buffer_load_dwordx4 %s, %s, %s, %s offen offset:%d' %
              (vr(vAd + 4 * ((c % D) * APT + j), 4), vr(vAg), sr(srdA, 4), sr(sArow[j]), c * 128))

    def load_W(c):
        if 'noload' in abl and c >= D:
            return
        for j in range(WPT):
            k('s_mov_b32 %s, %d' % (sr(sWoff), (c * BK + j * WROWS) * ldw))
            for w in range(NW):
                k('buffer_load_dwordx4 %s, %s, %s, %s offen' %
                  (vr(vWd[w] + 4 * ((c % D) * WPT + j), 4), vr(vWg), sr(srdW[w], 4), sr(sWoff)))

    def store_lds(c):
        if 'nowrite' in abl and c > 0:
            return
        p = c & 1
        for j in range(APT):
            src = vAd + 4 * (((c % D) * APT + j) if not ln else (c * APT + j))
            if alg:
                for q in range(4):
                    k('v_dot2_f32_bf16 %s, %s, %s, %s' % (vr(aS + j), vr(src + q), vr(aOnes), vr(aS + j)))
                    k('v_dot2_f32_bf16 %s, %s, %s, %s' % (vr(aQ + j), vr(src + q), vr(src + q), vr(aQ + j)))
            k('ds_write_b128 %s, %s offset:%d' % (vr(vAst), vr(src, 4), p * szA + j * 32 * PA))
        for w in range(NW):
            for j in range(WPT):
                k('ds_write_b128 %s, %s offset:%d' %
                  (vr(vWst1 if p else vWst), vr(vWd[w] + 4 * ((c % D) * WPT + j), 4), w * szW + j * WROWS * PW))

    if ln:
        for c in range(NC):
            for j in range(APT):
                k('buffer_load_dwordx4 %s, %s, %s, %s offen offset:%d' %
                  (vr(vAd + 4 * (c * APT + j), 4), vr(vAg), sr(srdA, 4), sr(sArow[j]), c * 128))
    else:
        for c in range(D):
            load_A(c)
    for c in range(D):
        load_W(c)
    for w in range(NW):
        for nb in range(TN):
            for mb in range(TM):
                for r in range(16):
                    k('v_mov_b32 %s, 0' % vr(acc[w][nb][mb] + r))

    if ln:
        vS = v.alloc(APT); vQ = v.alloc(APT)
        vOnes = v.alloc()
        vR2 = v.alloc(2 * APT, 2); vC2 = v.alloc(2 * APT, 2)
        tp = v.alloc(2, 2)
        k('v_mov_b32 %s, 0x3f803f80' % vr(vOnes))
        for j in range(APT):
            k('v_mov_b32 %s, 0' % vr(vS + j)); k('v_mov_b32 %s, 0' % vr(vQ + j))
        for c in range(NC):
            for j in range(APT):
                for q in range(4):
                    x = vAd + 4 * (c * APT + j) + q
                    k('v_dot2_f32_bf16 %s, %s, %s, %s' % (vr(vS + j), vr(x), vr(vOnes), vr(vS + j)))
                    k('v_dot2_f32_bf16 %s, %s, %s, %s' % (vr(vQ + j), vr(x), vr(x), vr(vQ + j)))
        for j in range(APT):
            for pm in ('quad_perm:[1,0,3,2]', 'quad_perm:[2,3,0,1]', 'row_half_mirror'):
                k('v_add_f32_dpp %s, %s, %s %s row_mask:0xf bank_mask:0xf' % (vr(t1), vr(vS + j), vr(vS + j), pm))
                k('v_add_f32_dpp %s, %s, %s %s row_mask:0xf bank_mask:0xf' % (vr(t2), vr(vQ + j), vr(vQ + j), pm))
                k('v_mov_b32 %s, %s' % (vr(vS + j), vr(t1)))
                k('v_mov_b32 %s, %s' % (vr(vQ + j), vr(t2)))
            S_ = vS + j; Q_ = vQ + j
            k('v_mul_f32 %s, 0x%08x, %s' % (vr(S_), f32bits(1.0 / K), vr(S_)))
            k('v_mul_f32 %s, 0x%08x, %s' % (vr(Q_), f32bits(1.0 / K), vr(Q_)))
            k('v_fma_f32 %s, -%s, %s, %s' % (vr(Q_), vr(S_), vr(S_), vr(Q_)))
            k('v_max_f32 %s, 0, %s' % (vr(Q_), vr(Q_)))
            k('v_cvt_pk_bf16_f32 %s, %s, %s' % (vr(t1), vr(S_), vr(Q_)))
            k('v_lshlrev_b32 %s, 16, %s' % (vr(S_), vr(t1)))
            k('v_and_b32 %s, 0xffff0000, %s' % (vr(Q_), vr(t1)))
            k('v_add_f32 %s, 0x%08x, %s' % (vr(Q_), f32bits(1e-5), vr(Q_)))
            k('v_cvt_pk_bf16_f32 %s, %s, %s' % (vr(t1), vr(Q_), vr(Q_)))
            k('v_lshlrev_b32 %s, 16, %s' % (vr(Q_), vr(t1)))
            k('v_sqrt_f32 %s, %s' % (vr(Q_), vr(Q_)))
            k('v_cvt_pk_bf16_f32 %s, %s, %s' % (vr(t1), vr(Q_), vr(Q_)))
            k('v_lshlrev_b32 %s, 16, %s' % (vr(Q_), vr(t1)))
            k('v_rcp_f32 %s, %s' % (vr(Q_), vr(Q_)))
            k('v_mov_b32 %s, %s' % (vr(vR2 + 2 * j), vr(Q_)))
            k('v_mov_b32 %s, %s' % (vr(vR2 + 2 * j + 1), vr(Q_)))
            k('v_mul_f32 %s, %s, %s' % (vr(vC2 + 2 * j), vr(S_), vr(Q_)))
            k('v_sub_f32 %s, 0, %s' % (vr(vC2 + 2 * j), vr(vC2 + 2 * j)))
            k('v_mov_b32 %s, %s' % (vr(vC2 + 2 * j + 1), vr(vC2 + 2 * j)))

        def normalize(c):
            for j in range(APT):
                for q in range(4):
                    x = vAd + 4 * (c * APT + j) + q
                    k('v_lshlrev_b32 %s, 16, %s' % (vr(tp), vr(x)))
                    k('v_and_b32 %s, 0xffff0000, %s' % (vr(tp + 1), vr(x)))
                    k('v_pk_fma_f32 %s, %s, %s, %s' % (vr(tp, 2), vr(tp, 2), vr(vR2 + 2 * j, 2), vr(vC2 + 2 * j, 2)))
                    k('v_cvt_pk_bf16_f32 %s, %s, %s' % (vr(x), vr(tp), vr(tp + 1)))
        normalize(0)
    stamp()
    store_lds(0)
    if D < NC:
        load_A(D); load_W(D)
    k('s_waitcnt lgkmcnt(0)')
    k('s_barrier')
    KS = BK // 16

    def frag_reads(c, ks, fs):
        if 'noread' in abl:
            return
        p = c & 1
        for mb in range(TM):
            k('ds_read_b128 %s, %s offset:%d' %
              (vr(vXf + 4 * (fs * TM + mb), 4), vr(vXa), p * szA + mb * 32 * PA + ks * 32))
        for w in range(NW):
            for nb in range(TN):
                base = w * szW + ks * 16 * PW + nb * 64
                r = vWf[w] + 4 * (fs * TN + nb)
                wa = vWa1 if p else vWa
                k('ds_read_b64_tr_b16 %s, %s offset:%d' % (vr(r, 2), vr(wa), base))
                k('ds_read_b64_tr_b16 %s, %s offset:%d' % (vr(r + 2, 2), vr(wa), base + 4 * PW))

    def mfmas(fs):
        if 'nomfma' in abl:
            return
        for w in range(NW):
            for nb in range(TN):
                for mb in range(TM):
                    a = acc[w][nb][mb]
                    k('v_mfma_f32_32x32x16_bf16 %s, %s, %s, %s' %
                      (vr(a, 16), vr(vWf[w] + 4 * (fs * TN + nb), 4), vr(vXf + 4 * (fs * TM + mb), 4), vr(a, 16)))

    for c in range(NC):
        stamp()
        for ks in range(KS):
            frag_reads(c, ks, ks)
        if c + 1 < NC:
            if ln:
                normalize(c + 1)
            store_lds(c + 1)
            if c + 1 + D < NC:
                load_A(c + 1 + D); load_W(c + 1 + D)
        for ks in range(KS):
            mfmas(ks)
        if c + 1 < NC:
            k('s_waitcnt lgkmcnt(0)')
            k('s_barrier')

    if alg:
        k('s_waitcnt lgkmcnt(0)')
        k('s_barrier')
        vSt = v.alloc(2, 2)
        k('v_lshrrev_b32 %s, 3, v0' % vr(t3))
        k('v_lshlrev_b32 %s, 3, %s' % (vr(t3), vr(t3)))
        for j in range(APT):
            for pm in ('quad_perm:[1,0,3,2]', 'quad_perm:[2,3,0,1]', 'row_half_mirror'):
                k('v_add_f32_dpp %s, %s, %s %s row_mask:0xf bank_mask:0xf' % (vr(t1), vr(aS + j), vr(aS + j), pm))
                k('v_add_f32_dpp %s, %s, %s %s row_mask:0xf bank_mask:0xf' % (vr(t2), vr(aQ + j), vr(aQ + j), pm))
                k('v_mov_b32 %s, %s' % (vr(aS + j), vr(t1)))
                k('v_mov_b32 %s, %s' % (vr(aQ + j), vr(t2)))
            S_ = aS + j; Q_ = aQ + j
            k('v_mul_f32 %s, 0x%08x, %s' % (vr(S_), f32bits(1.0 / K), vr(S_)))
            k('v_mul_f32 %s, 0x%08x, %s' % (vr(Q_), f32bits(1.0 / K), vr(Q_)))
            k('v_fma_f32 %s, -%s, %s, %s' % (vr(Q_), vr(S_), vr(S_), vr(Q_)))
            k('v_max_f32 %s, 0, %s' % (vr(Q_), vr(Q_)))
            k('v_cvt_pk_bf16_f32 %s, %s, %s' % (vr(t1), vr(S_), vr(Q_)))
            k('v_lshlrev_b32 %s, 16, %s' % (vr(vSt), vr(t1)))
            k('v_and_b32 %s, 0xffff0000, %s' % (vr(Q_), vr(t1)))
            k('v_add_f32 %s, 0x%08x, %s' % (vr(Q_), f32bits(1e-5), vr(Q_)))
            k('v_cvt_pk_bf16_f32 %s, %s, %s' % (vr(t1), vr(Q_), vr(Q_)))
            k('v_lshlrev_b32 %s, 16, %s' % (vr(Q_), vr(t1)))
            k('v_sqrt_f32 %s, %s' % (vr(Q_), vr(Q_)))
            k('v_cvt_pk_bf16_f32 %s, %s, %s' % (vr(t1), vr(Q_), vr(Q_)))
            k('v_lshlrev_b32 %s, 16, %s' % (vr(Q_), vr(t1)))
            k('v_rcp_f32 %s, %s' % (vr(vSt + 1), vr(Q_)))
            k('ds_write_b64 %s, %s offset:%d' % (vr(t3), vr(vSt, 2), j * 32 * 8))
        k('s_waitcnt lgkmcnt(0)')
        k('s_barrier')
        k('v_lshrrev_b32 %s, 1, %s' % (vr(t1), vr(vWave)))
        k('v_mul_u32_u24 %s, %d, %s' % (vr(t1), BM // 2, vr(t1)))
        k('v_and_b32 %s, 31, %s' % (vr(t2), vr(vLane)))
        k('v_add_lshl_u32 %s, %s, %s, 3' % (vr(t3), vr(t1), vr(t2)))
        vMR = v.alloc(2 * TM, 2)
        for mb in range(TM):
            k('ds_read_b64 %s, %s offset:%d' % (vr(vMR + 2 * mb, 2), vr(t3), mb * 32 * 8))
        srdC = s.alloc(4, 4)
        vCo = v.alloc()
        k('v_and_b32 %s, 1, %s' % (vr(t1), vr(vWave)))
        k('v_mul_u32_u24 %s, %d, %s' % (vr(t1), BN // 2, vr(t1)))
        k('v_lshrrev_b32 %s, 5, %s' % (vr(t2), vr(vLane)))
        k('v_lshlrev_b32 %s, 2, %s' % (vr(t2), vr(t2)))
        k('s_mul_i32 %s, %s, %d' % (sr(sT2), sr(sTn), BN))
        k('v_add3_u32 %s, %s, %s, %s' % (vr(vCo), vr(t1), vr(t2), sr(sT2)))
        k('v_lshlrev_b32 %s, 2, %s' % (vr(vCo), vr(vCo)))
        vCs = v.alloc(4, 4)
        for w in range(NW):
            make_srd(k, srdC, sTmp, alg[w], N * 4)
            for nb in range(TN):
                for g in range(4):
                    k('buffer_load_dwordx4 %s, %s, %s, 0 offen offset:%d' % (vr(vCs, 4), vr(vCo), sr(srdC, 4), (nb * 32 + 8 * g) * 4))
                    for mb in range(TM):
                        a = acc[w][nb][mb] + 4 * g
                        for e in range(4):
                            k('v_fma_f32 %s, -%s, %s, %s' % (vr(a + e), vr(vMR + 2 * mb), vr(vCs + e), vr(a + e)))
                            k('v_mul_f32 %s, %s, %s' % (vr(a + e), vr(vMR + 2 * mb + 1), vr(a + e)))
    if ln:
        v = RA(vAd, vAd + 4 * APT * NC)
    ctx = dict(k=k, v=v, s=s, acc=acc, TM=TM, TN=TN, BM=BM, BN=BN, vLane=vLane, vWave=vWave,
               sTm=sTm, sTn=sTn, sTmp=sTmp, srdO=srdO, srdR=srdR, t=(t1, t2, t3, t4), sT2=sT2, sT3=sT3,
               N=N, name=name)
    stamp()
    epi(ctx, **(epi_args or {}))
    stamp()
    if stamp_wg is not None:
        k('s_waitcnt lgkmcnt(0) vmcnt(0)')
        k('s_cmp_eq_u32 s2, %d' % stamp_wg)
        k('s_cbranch_scc0 L_end_%s' % name)
        make_srd(k, srdO, sTmp, ('dbg', 0), 256)
        k('v_cmp_eq_u32 vcc, 0, v0')
        k('s_and_saveexec_b64 %s, vcc' % sr(sTmp, 2))
        k('s_cbranch_execz L_end_%s' % name)
        for i, r in enumerate(stamps[1:]):
            k('s_sub_u32 %s, %s, %s' % (sr(sT2), sr(r), sr(stamps[0])))
            k('v_mov_b32 %s, %s' % (vr(t1), sr(sT2)))
            k('v_mov_b32 %s, %d' % (vr(t2), 4 * i))
            k('buffer_store_dword %s, %s, %s, 0 offen' % (vr(t1), vr(t2), sr(srdO, 4)))
    k.label('L_end_%s' % name)
    k('s_endpgm')
    k.lds = lds_total
    k.nwg = nwg
    return k
```

```python
from asmlib import Kernel
from gemm import RA, vr, sr, f32bits, SLOT, M_ROWS
import epi3
from epi3 import make_srd, preload_kernargs


def ar(b, n=1):
    return 'a%d' % b if n == 1 else 'a[%d:%d]' % (b, b + n - 1)


def gemm_kernel(name, K, N, BM, BN, A, Ws, epi, mode='tile', WM=2, WN=2, BK=64, NS=3, D=3, ln=False,
                GM=8, GN=1, epi_args=None, agpr=False, stamp_wg=None, abl=''):
    k = Kernel(name)
    NC = K // BK
    NW = len(Ws)
    NTM = M_ROWS // BM
    NTN = N // BN
    nwg = NTM * NTN
    lda = K * 2
    ldw = N * 2
    PA = BK * 2 + 16
    PW = BN * 2 + (64 if (BN * 2) % 128 == 0 else 0)
    assert PW % 256 in (64, 192), PW
    szA = BM * PA
    szW = BK * PW
    szS = szA + NW * szW
    lds_total = NS * szS
    if mode == 'tile':
        assert WM * WN == 4
        TM = BM // WM // 32
        TN = BN // WN // 32
        NST = BK // 16
        KMUL = 1
    else:
        TM = BM // 32
        TN = BN // 32
        assert TM * TN == 4
        NST = BK // 64
        KMUL = 4
        lds_total = max(lds_total, 4 * 4 * 4096)
    LPR = BK * 2 // 16
    XROWS = 256 // LPR
    APT = BM // XROWS
    PPR = BN * 2 // 16
    WPT = BK * PPR // 256
    assert BK * PPR % 256 == 0
    uniform_w = (256 % PPR == 0)
    D = min(D, NC)
    assert D >= NS - 1

    s = RA(4, 100)
    v = RA(1, 256)
    sTmp = s.alloc(2, 2)
    srdA = s.alloc(4, 4)
    srdW = [s.alloc(4, 4) for _ in range(NW)]
    srdO = s.alloc(4, 4)
    srdR = s.alloc(4, 4)
    sTm = s.alloc(); sTn = s.alloc(); sWoff = s.alloc(); sT2 = s.alloc(); sT3 = s.alloc(); sT4 = s.alloc()
    sArow = [s.alloc() for _ in range(APT)]

    stamps = []
    def stamp():
        if stamp_wg is None:
            return
        r = s.alloc(2, 2)
        stamps.append(r)
        k('s_memtime %s' % sr(r, 2))
        k('s_waitcnt lgkmcnt(0)')
    stamp()
    preload_kernargs(k, s)
    k('s_cmp_ge_u32 s2, %d' % nwg)
    k('s_cbranch_scc1 L_end_%s' % name)
    assert GM * GN == 8 and NTM % GM == 0 and NTN % GN == 0
    PM = NTM // GM; PN = NTN // GN
    magic = (1 << 32) // PN + 1
    k('s_lshr_b32 %s, s2, 3' % sr(sT3))
    k('s_and_b32 %s, s2, 7' % sr(sT4))
    if PN == 1:
        k('s_mov_b32 %s, %s' % (sr(sTm), sr(sT3)))
        k('s_mov_b32 %s, 0' % sr(sTn))
    else:
        k('s_mul_hi_u32 %s, %s, 0x%x' % (sr(sTm), sr(sT3), magic))
        k('s_mul_i32 %s, %s, %d' % (sr(sT2), sr(sTm), PN))
        k('s_sub_u32 %s, %s, %s' % (sr(sTn), sr(sT3), sr(sT2)))
    k('s_and_b32 %s, %s, %d' % (sr(sT2), sr(sT4), GM - 1))
    k('s_mul_i32 %s, %s, %d' % (sr(sT2), sr(sT2), PM))
    k('s_add_u32 %s, %s, %s' % (sr(sTm), sr(sTm), sr(sT2)))
    k('s_lshr_b32 %s, %s, %d' % (sr(sT2), sr(sT4), GM.bit_length() - 1))
    k('s_mul_i32 %s, %s, %d' % (sr(sT2), sr(sT2), PN))
    k('s_add_u32 %s, %s, %s' % (sr(sTn), sr(sTn), sr(sT2)))

    k('s_waitcnt lgkmcnt(0)')
    make_srd(k, srdA, sTmp, A, M_ROWS * lda)
    for i in range(NW):
        make_srd(k, srdW[i], sTmp, Ws[i], K * ldw)
    for j in range(APT):
        k('s_mov_b32 %s, %d' % (sr(sArow[j]), j * XROWS * lda))

    vLane = v.alloc(); vWave = v.alloc()
    k('v_and_b32 %s, 63, v0' % vr(vLane))
    k('v_lshrrev_b32 %s, 6, v0' % vr(vWave))
    t1 = v.alloc(); t2 = v.alloc(); t3 = v.alloc(); t4 = v.alloc()
    vAg = v.alloc(); vAst = v.alloc()
    sh = LPR.bit_length() - 1
    k('v_lshrrev_b32 %s, %d, v0' % (vr(t1), sh))
    k('v_and_b32 %s, %d, v0' % (vr(t2), LPR - 1))
    k('v_lshlrev_b32 %s, 4, %s' % (vr(t2), vr(t2)))
    k('s_mul_i32 %s, %s, %d' % (sr(sT2), sr(sTm), BM * lda))
    k('v_mul_u32_u24 %s, %d, %s' % (vr(vAg), lda, vr(t1)))
    k('v_add3_u32 %s, %s, %s, %s' % (vr(vAg), vr(vAg), vr(t2), sr(sT2)))
    k('v_mul_u32_u24 %s, %d, %s' % (vr(vAst), PA, vr(t1)))
    k('v_add_u32 %s, %s, %s' % (vr(vAst), vr(vAst), vr(t2)))
    k('s_mul_i32 %s, %s, %d' % (sr(sT2), sr(sTn), BN * 2))
    if uniform_w:
        nadr = 1
        WROWS = 256 // PPR
    else:
        nadr = WPT
    vWg = [v.alloc() for _ in range(nadr)]
    vWst = [v.alloc() for _ in range(nadr)]
    for j in range(nadr):
        if uniform_w:
            k('v_lshrrev_b32 %s, %d, v0' % (vr(t1), PPR.bit_length() - 1))
            k('v_and_b32 %s, %d, v0' % (vr(t2), PPR - 1))
        else:
            k('v_add_u32 %s, %d, v0' % (vr(t3), 256 * j))
            mg = (1 << 20) // PPR + 1
            assert all(((p * mg) >> 20) == p // PPR for p in range(256 * WPT))
            k('v_mul_u32_u24 %s, 0x%x, %s' % (vr(t1), mg, vr(t3)))
            k('v_lshrrev_b32 %s, 20, %s' % (vr(t1), vr(t1)))
            k('v_mul_u32_u24 %s, %d, %s' % (vr(t2), PPR, vr(t1)))
            k('v_sub_u32 %s, %s, %s' % (vr(t2), vr(t3), vr(t2)))
        k('v_lshlrev_b32 %s, 4, %s' % (vr(t2), vr(t2)))
        k('v_mul_u32_u24 %s, %d, %s' % (vr(vWg[j]), ldw, vr(t1)))
        k('v_add3_u32 %s, %s, %s, %s' % (vr(vWg[j]), vr(vWg[j]), vr(t2), sr(sT2)))
        k('v_mul_u32_u24 %s, %d, %s' % (vr(vWst[j]), PW, vr(t1)))
        k('v_add_u32 %s, %s, %s' % (vr(vWst[j]), vr(vWst[j]), vr(t2)))
        k('v_add_u32 %s, %d, %s' % (vr(vWst[j]), szA, vr(vWst[j])))
    vXa = v.alloc(); vWa = v.alloc()
    if mode == 'tile':
        k('v_lshrrev_b32 %s, %d, %s' % (vr(t1), WN.bit_length() - 1, vr(vWave)))
        k('v_and_b32 %s, %d, %s' % (vr(t2), WN - 1, vr(vWave)))
        k('v_mul_u32_u24 %s, %d, %s' % (vr(t1), BM // WM, vr(t1)))
        k('v_and_b32 %s, 31, %s' % (vr(t3), vr(vLane)))
        k('v_add_u32 %s, %s, %s' % (vr(t3), vr(t3), vr(t1)))
    else:
        k('v_and_b32 %s, 31, %s' % (vr(t3), vr(vLane)))
    k('v_mul_u32_u24 %s, %d, %s' % (vr(vXa), PA, vr(t3)))
    k('v_lshrrev_b32 %s, 5, %s' % (vr(t4), vr(vLane)))
    k('v_lshlrev_b32 %s, 4, %s' % (vr(t4), vr(t4)))
    k('v_add_u32 %s, %s, %s' % (vr(vXa), vr(vXa), vr(t4)))
    if mode != 'tile':
        k('v_lshl_add_u32 %s, %s, 5, %s' % (vr(vXa), vr(vWave), vr(vXa)))
    k('v_lshrrev_b32 %s, 5, %s' % (vr(t1), vr(vLane)))
    k('v_lshlrev_b32 %s, 3, %s' % (vr(t1), vr(t1)))
    k('v_bfe_u32 %s, %s, 2, 2' % (vr(t3), vr(vLane)))
    k('v_add_u32 %s, %s, %s' % (vr(t1), vr(t1), vr(t3)))
    if mode != 'tile':
        k('v_lshl_add_u32 %s, %s, 4, %s' % (vr(t1), vr(vWave), vr(t1)))
    k('v_mul_u32_u24 %s, %d, %s' % (vr(vWa), PW, vr(t1)))
    k('v_bfe_u32 %s, %s, 4, 1' % (vr(t3), vr(vLane)))
    k('v_lshlrev_b32 %s, 5, %s' % (vr(t3), vr(t3)))
    k('v_and_b32 %s, 3, %s' % (vr(t4), vr(vLane)))
    k('v_lshlrev_b32 %s, 3, %s' % (vr(t4), vr(t4)))
    k('v_add3_u32 %s, %s, %s, %s' % (vr(vWa), vr(vWa), vr(t3), vr(t4)))
    if mode == 'tile':
        k('v_mul_u32_u24 %s, %d, %s' % (vr(t2), BN // WN * 2, vr(t2)))
        k('v_add_u32 %s, %s, %s' % (vr(vWa), vr(vWa), vr(t2)))
    k('v_add_u32 %s, %d, %s' % (vr(vWa), szA, vr(vWa)))
    def staged(base):
        regs = [base]
        for st in range(1, NS):
            r = v.alloc()
            k('v_add_u32 %s, %d, %s' % (vr(r), st * szS, vr(base)))
            regs.append(r)
        return regs
    vXaS = staged(vXa); vWaS = staged(vWa); vAstS = staged(vAst)
    vWstS = [staged(r) for r in vWst]

    if ln:
        vAd = v.alloc(4 * APT * NC, 4)
    else:
        vAd = v.alloc(4 * APT * D, 4)
    vWd = [v.alloc(4 * WPT * D, 4) for _ in range(NW)]
    vXf = [v.alloc(4 * TM, 4) for _ in range(2)]
    vWf = [[v.alloc(4 * TN, 4) for _ in range(NW)] for _ in range(2)]
    if agpr:
        an = [0]
        def aalloc():
            r = an[0]; an[0] += 16; return r
        acc = [[[aalloc() for _ in range(TM)] for _ in range(TN)] for _ in range(NW)]
        accr = ar
    else:
        acc = [[[v.alloc(16, 4) for _ in range(TM)] for _ in range(TN)] for _ in range(NW)]
        accr = vr

    def load_A(c):
        out = []
        if ln:
            return out
        for j in range(APT):
            out.append('buffer_load_dwordx4 %s, %s, %s, %s offen offset:%d' %
                       (vr(vAd + 4 * ((c % D) * APT + j), 4), vr(vAg), sr(srdA, 4), sr(sArow[j]), c * BK * 2))
        return out

    def load_W(c):
        out = []
        for j in range(WPT):
            if uniform_w:
                pre = 's_mov_b32 %s, %d\n' % (sr(sWoff), (c * BK + j * WROWS) * ldw)
                adr = vWg[0]
            else:
                pre = 's_mov_b32 %s, %d\n' % (sr(sWoff), c * BK * ldw) if j == 0 else ''
                adr = vWg[j]
            for w in range(NW):
                out.append(pre + 'buffer_load_dwordx4 %s, %s, %s, %s offen' %
                           (vr(vWd[w] + 4 * ((c % D) * WPT + j), 4), vr(adr), sr(srdW[w], 4), sr(sWoff)))
                pre = ''
        return out

    ds_since_write = [0]

    def store_lds(c):
        out = []
        st = c % NS
        for j in range(APT):
            src = vAd + 4 * (((c % D) * APT + j) if not ln else (c * APT + j))
            pre = ''
            if ln:
                pre = normalize(c, j)
            out.append(pre + 'ds_write_b128 %s, %s offset:%d' % (vr(vAstS[st]), vr(src, 4), j * XROWS * PA))
        for w in range(NW):
            for j in range(WPT):
                if uniform_w:
                    out.append('ds_write_b128 %s, %s offset:%d' %
                               (vr(vWstS[0][st]), vr(vWd[w] + 4 * ((c % D) * WPT + j), 4), w * szW + j * WROWS * PW))
                else:
                    out.append('ds_write_b128 %s, %s offset:%d' %
                               (vr(vWstS[j][st]), vr(vWd[w] + 4 * ((c % D) * WPT + j), 4), w * szW))
        return out

    if ln:
        for c in range(NC):
            for j in range(APT):
                k('buffer_load_dwordx4 %s, %s, %s, %s offen offset:%d' %
                  (vr(vAd + 4 * (c * APT + j), 4), vr(vAg), sr(srdA, 4), sr(sArow[j]), c * BK * 2))
    else:
        for c in range(D):
            for x in load_A(c):
                k(x)
    for c in range(D):
        for x in load_W(c):
            k(x)

    if ln:
        vS = v.alloc(APT); vQ = v.alloc(APT)
        vOnes = v.alloc()
        vR2 = v.alloc(2 * APT, 2); vC2 = v.alloc(2 * APT, 2)
        tp = v.alloc(2, 2)
        k('v_mov_b32 %s, 0x3f803f80' % vr(vOnes))
        for j in range(APT):
            k('v_mov_b32 %s, 0' % vr(vS + j)); k('v_mov_b32 %s, 0' % vr(vQ + j))
        for c in range(NC):
            for j in range(APT):
                for q in range(4):
                    x = vAd + 4 * (c * APT + j) + q
                    k('v_dot2_f32_bf16 %s, %s, %s, %s' % (vr(vS + j), vr(x), vr(vOnes), vr(vS + j)))
                    k('v_dot2_f32_bf16 %s, %s, %s, %s' % (vr(vQ + j), vr(x), vr(x), vr(vQ + j)))
        pms = ['quad_perm:[1,0,3,2]', 'quad_perm:[2,3,0,1]'] + (['row_half_mirror'] if LPR == 8 else [])
        assert LPR in (4, 8)
        for j in range(APT):
            for pm in pms:
                k('v_add_f32_dpp %s, %s, %s %s row_mask:0xf bank_mask:0xf' % (vr(t1), vr(vS + j), vr(vS + j), pm))
                k('v_add_f32_dpp %s, %s, %s %s row_mask:0xf bank_mask:0xf' % (vr(t2), vr(vQ + j), vr(vQ + j), pm))
                k('v_mov_b32 %s, %s' % (vr(vS + j), vr(t1)))
                k('v_mov_b32 %s, %s' % (vr(vQ + j), vr(t2)))
            S_ = vS + j; Q_ = vQ + j
            k('v_mul_f32 %s, 0x%08x, %s' % (vr(S_), f32bits(1.0 / K), vr(S_)))
            k('v_mul_f32 %s, 0x%08x, %s' % (vr(Q_), f32bits(1.0 / K), vr(Q_)))
            k('v_fma_f32 %s, -%s, %s, %s' % (vr(Q_), vr(S_), vr(S_), vr(Q_)))
            k('v_max_f32 %s, 0, %s' % (vr(Q_), vr(Q_)))
            k('v_cvt_pk_bf16_f32 %s, %s, %s' % (vr(t1), vr(S_), vr(Q_)))
            k('v_lshlrev_b32 %s, 16, %s' % (vr(S_), vr(t1)))
            k('v_and_b32 %s, 0xffff0000, %s' % (vr(Q_), vr(t1)))
            k('v_add_f32 %s, 0x%08x, %s' % (vr(Q_), f32bits(1e-5), vr(Q_)))
            k('v_cvt_pk_bf16_f32 %s, %s, %s' % (vr(t1), vr(Q_), vr(Q_)))
            k('v_lshlrev_b32 %s, 16, %s' % (vr(Q_), vr(t1)))
            k('v_sqrt_f32 %s, %s' % (vr(Q_), vr(Q_)))
            k('v_cvt_pk_bf16_f32 %s, %s, %s' % (vr(t1), vr(Q_), vr(Q_)))
            k('v_lshlrev_b32 %s, 16, %s' % (vr(Q_), vr(t1)))
            k('v_rcp_f32 %s, %s' % (vr(Q_), vr(Q_)))
            k('v_mov_b32 %s, %s' % (vr(vR2 + 2 * j), vr(Q_)))
            k('v_mov_b32 %s, %s' % (vr(vR2 + 2 * j + 1), vr(Q_)))
            k('v_mul_f32 %s, %s, %s' % (vr(vC2 + 2 * j), vr(S_), vr(Q_)))
            k('v_sub_f32 %s, 0, %s' % (vr(vC2 + 2 * j), vr(vC2 + 2 * j)))
            k('v_mov_b32 %s, %s' % (vr(vC2 + 2 * j + 1), vr(vC2 + 2 * j)))

        def normalize(c, j):
            txt = ''
            if 'nonorm' in abl:
                return txt
            for q in range(4):
                x = vAd + 4 * (c * APT + j) + q
                txt += 'v_lshlrev_b32 %s, 16, %s\n' % (vr(tp), vr(x))
                txt += 'v_and_b32 %s, 0xffff0000, %s\n' % (vr(tp + 1), vr(x))
                if 'pk' in abl:
                    txt += 'v_pk_fma_f32 %s, %s, %s, %s\n' % (vr(tp, 2), vr(tp, 2), vr(vR2 + 2 * j, 2), vr(vC2 + 2 * j, 2))
                else:
                    txt += 'v_fma_f32 %s, %s, %s, %s\n' % (vr(tp), vr(tp), vr(vR2 + 2 * j), vr(vC2 + 2 * j))
                    txt += 'v_fma_f32 %s, %s, %s, %s\n' % (vr(tp + 1), vr(tp + 1), vr(vR2 + 2 * j), vr(vC2 + 2 * j))
                txt += 'v_cvt_pk_bf16_f32 %s, %s, %s\n' % (vr(x), vr(tp), vr(tp + 1))
            return txt

    stamp()
    for c in range(min(NS - 1, NC)):
        for x in store_lds(c):
            k(x)
        if c + D < NC:
            for x in load_A(c + D) + load_W(c + D):
                k(x)
    k('s_waitcnt lgkmcnt(0)')
    k('s_barrier')
    stamp()

    def frag_reads(c, stp, fs):
        out = []
        st = c % NS
        ks = stp * KMUL
        for mb in range(TM):
            out.append('ds_read_b128 %s, %s offset:%d' %
                       (vr(vXf[fs] + 4 * mb, 4), vr(vXaS[st]), mb * 32 * PA + ks * 32))
        for w in range(NW):
            for nb in range(TN):
                base = w * szW + ks * 16 * PW + nb * 64
                r = vWf[fs][w] + 4 * nb
                out.append('ds_read_b64_tr_b16 %s, %s offset:%d' % (vr(r, 2), vr(vWaS[st]), base))
                out.append('ds_read_b64_tr_b16 %s, %s offset:%d' % (vr(r + 2, 2), vr(vWaS[st]), base + 4 * PW))
        return out

    def mfmas(fs, first):
        out = []
        for w in range(NW):
            for nb in range(TN):
                for mb in range(TM):
                    a = acc[w][nb][mb]
                    out.append('v_mfma_f32_32x32x16_bf16 %s, %s, %s, %s' %
                               (accr(a, 16), vr(vWf[fs][w] + 4 * nb, 4), vr(vXf[fs] + 4 * mb, 4),
                                '0' if first else accr(a, 16)))
        return out

    for x in frag_reads(0, 0, 0):
        k(x)
    fs = 0
    for c in range(NC):
        cw = c + NS - 1
        wl = []
        if cw < NC:
            wl = store_lds(cw)
            ll = (load_A(cw + D) + load_W(cw + D)) if cw + D < NC else []
            if 'noload' in abl:
                ll = []
            if 'nowrite' in abl:
                wl = []
            wl = wl + ll
        flat = []
        for x in wl:
            flat += [l for l in x.split('\n') if l.strip()]
        def cost(l):
            if l.startswith('ds_write'): return 13
            if l.startswith('buffer_'): return 12
            if l.startswith('s_'): return 1
            return 4
        tot = sum(cost(l) for l in flat)
        nds_after = 0
        pos = 0
        done = 0
        nm_tot = NST * NW * TM * TN
        mi = 0
        for stp in range(NST):
            rl = []
            last = (stp == NST - 1)
            if not last:
                rl = frag_reads(c, stp + 1, fs ^ 1)
            elif c + 1 < NC and NS >= 3:
                rl = frag_reads(c + 1, 0, fs ^ 1)
            ml = mfmas(fs, c == 0 and stp == 0)
            nm = len(ml)
            nr = max(1, nm - 1)
            for i, m in enumerate(ml):
                k(m)
                mi += 1
                out = rl[i * len(rl) // nr:(i + 1) * len(rl) // nr] if i < nr else []
                while pos < len(flat) and done < tot * mi / (0.8 * nm_tot):
                    out.append(flat[pos]); done += cost(flat[pos]); pos += 1
                for line in out:
                    k(line)
                    if line.startswith('ds_write'):
                        nds_after = 0
                    elif line.startswith('ds_'):
                        nds_after += 1
            fs ^= 1
        assert pos == len(flat)
        if cw < NC:
            k('s_waitcnt lgkmcnt(%d)' % min(nds_after, 15))
            k('s_barrier')
        if c + 1 < NC and NS < 3:
            for x in frag_reads(c + 1, 0, fs):
                k(x)

    stamp()
    if ln:
        v2 = RA(vAd, vAd + 4 * APT * NC)
    else:
        v2 = RA(vAd, vXf[0])
    vM = v2.alloc(); vN = v2.alloc()
    k('s_mul_i32 %s, %s, %d' % (sr(sT2), sr(sTm), BM))
    k('s_mul_i32 %s, %s, %d' % (sr(sT3), sr(sTn), BN))
    k('v_and_b32 %s, 31, %s' % (vr(t3), vr(vLane)))
    k('v_lshrrev_b32 %s, 5, %s' % (vr(t4), vr(vLane)))
    k('v_lshlrev_b32 %s, 2, %s' % (vr(t4), vr(t4)))
    if mode == 'tile':
        k('v_lshrrev_b32 %s, %d, %s' % (vr(t1), WN.bit_length() - 1, vr(vWave)))
        k('v_and_b32 %s, %d, %s' % (vr(t2), WN - 1, vr(vWave)))
        k('v_mul_u32_u24 %s, %d, %s' % (vr(t1), BM // WM, vr(t1)))
        k('v_mul_u32_u24 %s, %d, %s' % (vr(t2), BN // WN, vr(t2)))
    else:
        k('v_and_b32 %s, %d, %s' % (vr(t1), TM - 1, vr(vWave)))
        k('v_lshrrev_b32 %s, %d, %s' % (vr(t2), TM.bit_length() - 1, vr(vWave)))
        k('v_lshlrev_b32 %s, 5, %s' % (vr(t1), vr(t1)))
        k('v_lshlrev_b32 %s, 5, %s' % (vr(t2), vr(t2)))
    k('v_add3_u32 %s, %s, %s, %s' % (vr(vM), vr(t1), vr(t3), sr(sT2)))
    k('v_add3_u32 %s, %s, %s, %s' % (vr(vN), vr(t2), vr(t4), sr(sT3)))

    eacc = acc
    eTM, eTN = TM, TN
    ctx = dict(k=k, v=v2, s=s, BM=BM, BN=BN, vLane=vLane, vWave=vWave,
               sTm=sTm, sTn=sTn, sTmp=sTmp, srdO=srdO, srdR=srdR, t=(t1, t2, t3, t4), sT2=sT2, sT3=sT3,
               N=N, name=name, vM=vM, vN=vN, agpr=agpr)
    if hasattr(epi, 'pre'):
        epi.pre(ctx, **(epi_args or {}))
    if mode != 'tile':
        k('s_waitcnt lgkmcnt(0)')
        k('s_barrier')
        vRa = v2.alloc(); vRb = v2.alloc()
        k('v_lshlrev_b32 %s, 4, %s' % (vr(t1), vr(vLane)))
        k('v_lshl_add_u32 %s, %s, 14, %s' % (vr(vRa), vr(vWave), vr(t1)))
        k('v_lshl_add_u32 %s, %s, 12, %s' % (vr(vRb), vr(vWave), vr(t1)))
        for nb in range(TN):
            for mb in range(TM):
                a = acc[0][nb][mb]
                b = nb * TM + mb
                for q in range(4):
                    k('ds_write_b128 %s, %s offset:%d' % (vr(vRa), vr(a + 4 * q, 4), b * 4096 + q * 1024))
        k('s_waitcnt lgkmcnt(0)')
        k('s_barrier')
        vSum = [v.alloc(16, 4) for _ in range(4)]
        for srcw in range(4):
            for q in range(4):
                k('ds_read_b128 %s, %s offset:%d' % (vr(vSum[srcw] + 4 * q, 4), vr(vRb), srcw * 16384 + q * 1024))
        for r in range(0, 16, 2):
            k('v_pk_add_f32 %s, %s, %s' % (vr(vSum[0] + r, 2), vr(vSum[0] + r, 2), vr(vSum[1] + r, 2)))
            k('v_pk_add_f32 %s, %s, %s' % (vr(vSum[2] + r, 2), vr(vSum[2] + r, 2), vr(vSum[3] + r, 2)))
            k('v_pk_add_f32 %s, %s, %s' % (vr(vSum[0] + r, 2), vr(vSum[0] + r, 2), vr(vSum[2] + r, 2)))
        eacc = [[[vSum[0]]]]
        eTM = eTN = 1
    ctx.update(acc=eacc, TM=eTM, TN=eTN)
    epi(ctx, **(epi_args or {}))
    if stamp_wg is not None:
        stamp()
        k('s_waitcnt lgkmcnt(0) vmcnt(0)')
        stamp()
        k('s_cmp_eq_u32 s2, %d' % stamp_wg)
        k('s_cbranch_scc0 L_end_%s' % name)
        make_srd(k, srdO, sTmp, ('dbg', 0), 256)
        k('v_cmp_eq_u32 vcc, 0, v0')
        k('s_and_saveexec_b64 %s, vcc' % sr(sTmp, 2))
        k('s_cbranch_execz L_end_%s' % name)
        for i, r in enumerate(stamps[1:]):
            k('s_sub_u32 %s, %s, %s' % (sr(sT2), sr(r), sr(stamps[0])))
            k('v_mov_b32 %s, %s' % (vr(t1), sr(sT2)))
            k('v_mov_b32 %s, %d' % (vr(t2), 4 * i))
            k('buffer_store_dword %s, %s, %s, 0 offen' % (vr(t1), vr(t2), sr(srdO, 4)))
    k.label('L_end_%s' % name)
    k('s_endpgm')
    k.lds = lds_total
    k.nwg = nwg
    return k
```

```python
import sys
sys.path.insert(0, 'work')
from asmlib import build_file
from gemm import epi_resid, epi_qkv, epi_swiglu
import gemm2, gemm3, epi3
from epi3 import epi_swiglu3, epi_resid3
from attn4 import attn_kernel

WS_QKV = 0
WS_AO = 0x600000
WS_X1 = 0x800000
WS_X2 = 0xA00000
WS_H = 0xC00000

def build(out_path, nk=10):
    ks = []
    for L in range(2):
        xin = ('A_x', 0) if L == 0 else ('ws', WS_X2)
        xout2 = ('ws', WS_X2) if L == 0 else ('out', 0)
        ks.append(gemm3.gemm_kernel('g1_%d_kernel' % L, 448, 1344, 64, 192, xin, [('A_wqkv', 0)], epi_qkv,
                                    mode='tile', WM=2, WN=2, BK=64, NS=3, D=2, ln=True, GM=8, GN=1,
                                    epi_args=dict(qkv=('ws', WS_QKV))))
        ks.append(attn_kernel('attn_%d_kernel' % L, ('ws', WS_QKV), ('ws', WS_AO)))
        ks.append(gemm3.gemm_kernel('g3_%d_kernel' % L, 448, 448, 64, 64, ('ws', WS_AO), [('A_wo', 0)], epi_resid3,
                                    mode='splitk', BK=64, NS=3, D=4, GM=8, GN=1,
                                    epi_args=dict(res=xin, out=('ws', WS_X1))))
        ks.append(gemm3.gemm_kernel('g4_%d_kernel' % L, 448, 1792, 128, 128, ('ws', WS_X1), [('B_w1', 0), ('B_w3', 0)],
                                    epi_swiglu3, mode='tile', WM=2, WN=2, BK=32, NS=3, D=2, ln=True, GM=4, GN=2,
                                    agpr=True, epi_args=dict(out=('ws', WS_H))))
        ks.append(gemm3.gemm_kernel('g5_%d_kernel' % L, 1792, 448, 64, 64, ('ws', WS_H), [('B_w2', 0)], epi_resid3,
                                    mode='splitk', BK=64, NS=3, D=4, GM=8, GN=1,
                                    epi_args=dict(res=('ws', WS_X1), out=xout2)))
    ks = ks[:nk]
    for k in ks:
        k.finalize()
        print(k.name, 'vgpr', k.vgpr_hi, 'agpr', k.agpr_hi, 'sgpr', k.sgpr_hi, 'lds', k.lds, 'nwg', k.nwg, 'ninst', len(k.items))
    launches = [(k.name, (k.nwg, 1, 1), (256, 1, 1), k.lds) for k in ks]
    open(out_path, 'w').write(build_file(ks, launches))

if __name__ == '__main__':
    build(sys.argv[1] if len(sys.argv) > 1 else 'full.s', int(sys.argv[2]) if len(sys.argv) > 2 else 10)
```

```python
from asmlib import Kernel
from gemm import RA, vr, sr, make_srd, f32bits
import math

S_LEN = 2048
NH = 16
DH = 28


def attn_kernel(name, qkv, ao):
    k = Kernel(name)
    KT = 128
    NKB = KT // 32
    NIT = (S_LEN // 2) // KT
    PK = 80
    PV = 64
    szK = KT * PK
    szV = KT * PV
    offV = 4 * szK
    lds_total = offV + 4 * szV
    nwg = NH * (S_LEN // 64)
    CSC = (DH ** -0.5) * math.log2(math.e)

    s = RA(4, 100)
    v = RA(1, 256)
    sTmp = s.alloc(2, 2)
    srdQ = s.alloc(4, 4)
    srdO = s.alloc(4, 4)
    sHead = s.alloc(); sQb = s.alloc(); sT = s.alloc(); sKoff = s.alloc(); sVoff = s.alloc()
    sCnt = s.alloc(); sC = s.alloc(2, 2)

    k('s_cmp_ge_u32 s2, %d' % nwg)
    k('s_cbranch_scc1 L_end_%s' % name)
    k('s_and_b32 %s, s2, 7' % sr(sHead))
    k('s_lshl_b32 %s, %s, 1' % (sr(sHead), sr(sHead)))
    k('s_bfe_u32 %s, s2, 0x10003' % sr(sT))
    k('s_add_u32 %s, %s, %s' % (sr(sHead), sr(sHead), sr(sT)))
    k('s_lshr_b32 %s, s2, 4' % sr(sQb))
    make_srd(k, srdQ, sTmp, qkv, 3 * 16 * 2048 * 64)
    make_srd(k, srdO, sTmp, ao, 2048 * 448 * 2)
    k('s_mov_b32 %s, 0x%08x' % (sr(sC), f32bits(CSC)))
    k('s_mov_b32 %s, 0x%08x' % (sr(sC + 1), f32bits(CSC)))

    vLane = v.alloc(); vWave = v.alloc(); vHH = v.alloc(); vKh = v.alloc()
    t1 = v.alloc(); t2 = v.alloc(); t3 = v.alloc(); t4 = v.alloc()
    k('v_and_b32 %s, 63, v0' % vr(vLane))
    k('v_lshrrev_b32 %s, 6, v0' % vr(vWave))
    k('v_lshrrev_b32 %s, 5, %s' % (vr(vHH), vr(vLane)))
    k('v_lshrrev_b32 %s, 1, %s' % (vr(vKh), vr(vWave)))

    vQ = v.alloc(8, 4)
    vQoff = v.alloc()
    k('v_and_b32 %s, 31, %s' % (vr(t1), vr(vLane)))
    k('v_and_b32 %s, 1, %s' % (vr(t2), vr(vWave)))
    k('v_lshl_add_u32 %s, %s, 5, %s' % (vr(t1), vr(t2), vr(t1)))
    k('s_lshl_b32 %s, %s, 6' % (sr(sT), sr(sQb)))
    k('v_add_u32 %s, %s, %s' % (vr(t1), sr(sT), vr(t1)))
    vQrow = v.alloc()
    k('v_mov_b32 %s, %s' % (vr(vQrow), vr(t1)))
    k('s_lshl_b32 %s, %s, 11' % (sr(sT), sr(sHead)))
    k('v_add_u32 %s, %s, %s' % (vr(t1), sr(sT), vr(t1)))
    k('v_lshlrev_b32 %s, 6, %s' % (vr(vQoff), vr(t1)))
    k('v_lshl_add_u32 %s, %s, 4, %s' % (vr(vQoff), vr(vHH), vr(vQoff)))
    k('buffer_load_dwordx4 %s, %s, %s, 0 offen' % (vr(vQ, 4), vr(vQoff), sr(srdQ, 4)))
    k('buffer_load_dwordx4 %s, %s, %s, 0 offen offset:32' % (vr(vQ + 4, 4), vr(vQoff), sr(srdQ, 4)))

    vKg = v.alloc(); vKst = v.alloc(); vVst = v.alloc(); vMask = v.alloc(); vOne = v.alloc()
    k('v_bfe_u32 %s, v0, 2, 5' % vr(t1))
    k('v_and_b32 %s, 3, v0' % vr(t2))
    k('v_lshrrev_b32 %s, 7, v0' % vr(t3))
    k('v_lshl_add_u32 %s, %s, 10, %s' % (vr(t4), vr(t3), vr(t1)))
    k('v_lshlrev_b32 %s, 6, %s' % (vr(vKg), vr(t4)))
    k('v_lshl_add_u32 %s, %s, 4, %s' % (vr(vKg), vr(t2), vr(vKg)))
    k('v_mul_u32_u24 %s, %d, %s' % (vr(vKst), PK, vr(t1)))
    k('v_lshl_add_u32 %s, %s, 4, %s' % (vr(vKst), vr(t2), vr(vKst)))
    k('v_mul_u32_u24 %s, %d, %s' % (vr(t4), 2 * szK, vr(t3)))
    k('v_add_u32 %s, %s, %s' % (vr(vKst), vr(vKst), vr(t4)))
    k('v_mul_u32_u24 %s, %d, %s' % (vr(vVst), PV, vr(t1)))
    k('v_lshl_add_u32 %s, %s, 4, %s' % (vr(vVst), vr(t2), vr(vVst)))
    k('v_mul_u32_u24 %s, %d, %s' % (vr(t4), 2 * szV, vr(t3)))
    k('v_add3_u32 %s, %s, %s, %d' % (vr(vVst), vr(vVst), vr(t4), 0) if False else
      'v_add_u32 %s, %s, %s' % (vr(vVst), vr(vVst), vr(t4)))
    k('v_add_u32 %s, %d, %s' % (vr(vVst), offV, vr(vVst)))
    k('v_cmp_eq_u32 vcc, 3, %s' % vr(t2))
    k('v_cndmask_b32 %s, -1, 0, vcc' % vr(vMask))
    k('v_mov_b32 %s, 0x3f80' % vr(t3))
    k('v_cndmask_b32 %s, 0, %s, vcc' % (vr(vOne), vr(t3)))
    k('s_lshl_b32 %s, %s, 17' % (sr(sKoff), sr(sHead)))
    k('s_add_u32 %s, %s, 0x400000' % (sr(sVoff), sr(sKoff)))
    k('s_add_u32 %s, %s, 0x200000' % (sr(sKoff), sr(sKoff)))
    vKd = v.alloc(4 * NKB, 4); vVd = v.alloc(4 * NKB, 4)

    def load_tile():
        for h in range(NKB):
            k('buffer_load_dwordx4 %s, %s, %s, %s offen offset:%d' % (vr(vKd + 4 * h, 4), vr(vKg), sr(srdQ, 4), sr(sKoff), (h & 1) * 2048))
            k('buffer_load_dwordx4 %s, %s, %s, %s offen offset:%d' % (vr(vVd + 4 * h, 4), vr(vKg), sr(srdQ, 4), sr(sVoff), (h & 1) * 2048))
            if h == 1:
                k('s_add_u32 %s, %s, 4096' % (sr(sKoff), sr(sKoff)))
                k('s_add_u32 %s, %s, 4096' % (sr(sVoff), sr(sVoff)))
        k('s_add_u32 %s, %s, %d' % (sr(sKoff), sr(sKoff), 4096))
        k('s_add_u32 %s, %s, %d' % (sr(sVoff), sr(sVoff), 4096))

    def store_tile(p, only=None):
        for h in range(NKB):
            if only is not None and h != only:
                continue
            k('v_and_b32 %s, %s, %s' % (vr(vKd + 4 * h + 2), vr(vMask), vr(vKd + 4 * h + 2)))
            k('v_and_b32 %s, %s, %s' % (vr(vKd + 4 * h + 3), vr(vMask), vr(vKd + 4 * h + 3)))
            k('v_and_or_b32 %s, %s, %s, %s' % (vr(vVd + 4 * h + 2), vr(vVd + 4 * h + 2), vr(vMask), vr(vOne)))
            k('v_and_b32 %s, %s, %s' % (vr(vVd + 4 * h + 3), vr(vMask), vr(vVd + 4 * h + 3)))
            k('ds_write_b128 %s, %s offset:%d' % (vr(vKst), vr(vKd + 4 * h, 4), p * szK + h * 32 * PK))
            k('ds_write_b128 %s, %s offset:%d' % (vr(vVst), vr(vVd + 4 * h, 4), p * szV + h * 32 * PV))

    vKa = v.alloc(); vVa = v.alloc()
    k('v_and_b32 %s, 31, %s' % (vr(t1), vr(vLane)))
    k('v_mul_u32_u24 %s, %d, %s' % (vr(vKa), PK, vr(t1)))
    k('v_lshl_add_u32 %s, %s, 4, %s' % (vr(vKa), vr(vHH), vr(vKa)))
    k('v_mul_u32_u24 %s, %d, %s' % (vr(t2), 2 * szK, vr(vKh)))
    k('v_add_u32 %s, %s, %s' % (vr(vKa), vr(vKa), vr(t2)))
    k('v_bfe_u32 %s, %s, 2, 2' % (vr(t1), vr(vLane)))
    k('v_lshl_add_u32 %s, %s, 2, %s' % (vr(t1), vr(vHH), vr(t1)))
    k('v_mul_u32_u24 %s, %d, %s' % (vr(vVa), PV, vr(t1)))
    k('v_bfe_u32 %s, %s, 4, 1' % (vr(t2), vr(vLane)))
    k('v_lshl_add_u32 %s, %s, 5, %s' % (vr(vVa), vr(t2), vr(vVa)))
    k('v_and_b32 %s, 3, %s' % (vr(t2), vr(vLane)))
    k('v_lshl_add_u32 %s, %s, 3, %s' % (vr(vVa), vr(t2), vr(vVa)))
    k('v_mul_u32_u24 %s, %d, %s' % (vr(t2), 2 * szV, vr(vKh)))
    k('v_add_u32 %s, %s, %s' % (vr(vVa), vr(vVa), vr(t2)))
    k('v_add_u32 %s, %d, %s' % (vr(vVa), offV, vr(vVa)))

    vS = v.alloc(16 * NKB, 4)
    vP = v.alloc(8 * NKB, 4)
    vO = v.alloc(16, 4)
    vKf = v.alloc(8 * NKB, 4)
    vVf = v.alloc(8 * NKB, 4)
    vM = v.alloc(); vMx = v.alloc(); vMx2 = v.alloc(); vAl = v.alloc(2, 2); vMc = v.alloc(2, 2)
    for r in range(16):
        k('v_mov_b32 %s, 0' % vr(vO + r))
    k('v_mov_b32 %s, 0xff800000' % vr(vM))

    load_tile()
    store_tile(0)
    k('v_cmp_eq_u32 vcc, 1, %s' % vr(vHH))
    k('v_cndmask_b32 %s, -1, 0, vcc' % vr(t1))
    k('v_and_b32 %s, %s, %s' % (vr(vQ + 6), vr(t1), vr(vQ + 6)))
    k('v_and_b32 %s, %s, %s' % (vr(vQ + 7), vr(t1), vr(vQ + 7)))
    k('s_waitcnt lgkmcnt(0)')
    k('s_barrier')
    k('s_mov_b32 %s, 0' % sr(sCnt))
    k.label('L_loop_%s' % name)
    for p in range(2):
        load_tile()
        for kb in range(NKB):
            for c in range(2):
                k('ds_read_b128 %s, %s offset:%d' %
                  (vr(vKf + 8 * kb + 4 * c, 4), vr(vKa), p * szK + kb * 32 * PK + c * 32))
        for kb in range(NKB):
            k('v_mfma_f32_32x32x16_bf16 %s, %s, %s, 0' % (vr(vS + 16 * kb, 16), vr(vKf + 8 * kb, 4), vr(vQ, 4)))
            k('v_mfma_f32_32x32x16_bf16 %s, %s, %s, %s' %
              (vr(vS + 16 * kb, 16), vr(vKf + 8 * kb + 4, 4), vr(vQ + 4, 4), vr(vS + 16 * kb, 16)))
        for kg in range(2 * NKB):
            base = p * szV + kg * 16 * PV
            k('ds_read_b64_tr_b16 %s, %s offset:%d' % (vr(vVf + 4 * kg, 2), vr(vVa), base))
            k('ds_read_b64_tr_b16 %s, %s offset:%d' % (vr(vVf + 4 * kg + 2, 2), vr(vVa), base + 8 * PV))
        H = 8 * NKB
        ch = [vMx, vMx2]
        for c in range(2):
            k('v_max3_f32 %s, %s, %s, %s' % (vr(ch[c]), vr(vS + c * H), vr(vS + c * H + 1), vr(vS + c * H + 2)))
        for j in range(3, H - 1, 2):
            for c in range(2):
                k('v_max3_f32 %s, %s, %s, %s' % (vr(ch[c]), vr(ch[c]), vr(vS + c * H + j), vr(vS + c * H + j + 1)))
        k('v_max3_f32 %s, %s, %s, %s' % (vr(vMx), vr(vMx), vr(vS + H - 1), vr(vS + 2 * H - 1)))
        k('v_max_f32 %s, %s, %s' % (vr(vMx), vr(vMx), vr(vMx2)))
        k('v_mov_b32 %s, %s' % (vr(t1), vr(vMx)))
        k('v_permlane32_swap_b32 %s, %s' % (vr(vMx), vr(t1)))
        k('v_max3_f32 %s, %s, %s, %s' % (vr(vMx), vr(vMx), vr(t1), vr(vM)))
        k('v_sub_f32 %s, %s, %s' % (vr(vAl), vr(vM), vr(vMx)))
        k('v_mul_f32 %s, %s, %s' % (vr(vAl), sr(sC), vr(vAl)))
        k('v_exp_f32 %s, %s' % (vr(vAl), vr(vAl)))
        k('v_mov_b32 %s, %s' % (vr(vM), vr(vMx)))
        k('v_mul_f32 %s, %s, %s' % (vr(vMc), sr(sC), vr(vMx)))
        k('v_sub_f32 %s, 0, %s' % (vr(vMc), vr(vMc)))
        k('v_mov_b32 %s, %s' % (vr(vMc + 1), vr(vMc)))
        k('v_mov_b32 %s, %s' % (vr(vAl + 1), vr(vAl)))
        for j in range(8 * NKB):
            k('v_pk_fma_f32 %s, %s, %s, %s' % (vr(vS + 2 * j, 2), vr(vS + 2 * j, 2), sr(sC, 2), vr(vMc, 2)))
        for j in range(16 * NKB):
            k('v_exp_f32 %s, %s' % (vr(vS + j), vr(vS + j)))
        for j in range(8 * NKB):
            k('v_cvt_pk_bf16_f32 %s, %s, %s' % (vr(vP + j), vr(vS + 2 * j), vr(vS + 2 * j + 1)))
        for r in range(8):
            k('v_pk_mul_f32 %s, %s, %s' % (vr(vO + 2 * r, 2), vr(vO + 2 * r, 2), vr(vAl, 2)))
        for kg in range(2 * NKB):
            k('v_mfma_f32_32x32x16_bf16 %s, %s, %s, %s' %
              (vr(vO, 16), vr(vVf + 4 * kg, 4), vr(vP + 4 * kg, 4), vr(vO, 16)))
            if kg % 2 == 0:
                store_tile(p ^ 1, kg // 2)
        k('s_waitcnt lgkmcnt(0)')
        k('s_barrier')
    k('s_add_u32 %s, %s, 1' % (sr(sCnt), sr(sCnt)))
    k('s_cmp_lt_u32 %s, %d' % (sr(sCnt), NIT // 2))
    k('s_cbranch_scc1 L_loop_%s' % name)

    vCa = v.alloc()
    k('v_and_b32 %s, 1, %s' % (vr(t1), vr(vWave)))
    k('v_mul_u32_u24 %s, %d, %s' % (vr(t1), 17 * 256, vr(t1)))
    k('v_lshl_add_u32 %s, %s, 2, %s' % (vr(vCa), vr(vLane), vr(t1)))
    k('v_cmp_eq_u32 vcc, 1, %s' % vr(vKh))
    k('s_and_saveexec_b64 %s, vcc' % sr(sTmp, 2))
    k('s_cbranch_execz L_skipw_%s' % name)
    for r in range(16):
        k('ds_write_b32 %s, %s offset:%d' % (vr(vCa), vr(vO + r), r * 256))
    k('ds_write_b32 %s, %s offset:%d' % (vr(vCa), vr(vM), 16 * 256))
    k.label('L_skipw_%s' % name)
    k('s_mov_b64 exec, %s' % sr(sTmp, 2))
    k('s_waitcnt lgkmcnt(0)')
    k('s_barrier')
    k('v_cmp_eq_u32 vcc, 0, %s' % vr(vKh))
    k('s_and_saveexec_b64 %s, vcc' % sr(sTmp, 2))
    k('s_cbranch_execz L_end_%s' % name)
    for r in range(16):
        k('ds_read_b32 %s, %s offset:%d' % (vr(vS + r), vr(vCa), r * 256))
    k('ds_read_b32 %s, %s offset:%d' % (vr(t3), vr(vCa), 16 * 256))
    k('v_max_f32 %s, %s, %s' % (vr(vMx), vr(vM), vr(t3)))
    k('v_sub_f32 %s, %s, %s' % (vr(t1), vr(vM), vr(vMx)))
    k('v_sub_f32 %s, %s, %s' % (vr(t2), vr(t3), vr(vMx)))
    k('v_mul_f32 %s, %s, %s' % (vr(t1), sr(sC), vr(t1)))
    k('v_mul_f32 %s, %s, %s' % (vr(t2), sr(sC), vr(t2)))
    k('v_exp_f32 %s, %s' % (vr(t1), vr(t1)))
    k('v_exp_f32 %s, %s' % (vr(t2), vr(t2)))
    for r in range(16):
        k('v_mul_f32 %s, %s, %s' % (vr(vO + r), vr(t1), vr(vO + r)))
        k('v_fmac_f32 %s, %s, %s' % (vr(vO + r), vr(t2), vr(vS + r)))
    k('v_mov_b32 %s, %s' % (vr(t1), vr(vO + 12)))
    k('v_mov_b32 %s, %s' % (vr(t2), vr(vO + 12)))
    k('v_permlane32_swap_b32 %s, %s' % (vr(t1), vr(t2)))
    k('v_rcp_f32 %s, %s' % (vr(t2), vr(t2)))
    vOoff = v.alloc()
    k('v_mul_u32_u24 %s, 896, %s' % (vr(vOoff), vr(vQrow)))
    k('s_mul_i32 %s, %s, 56' % (sr(sT), sr(sHead)))
    k('v_add_u32 %s, %s, %s' % (vr(vOoff), sr(sT), vr(vOoff)))
    k('v_lshl_add_u32 %s, %s, 3, %s' % (vr(vOoff), vr(vHH), vr(vOoff)))
    for r in range(16):
        k('v_mul_f32 %s, %s, %s' % (vr(vO + r), vr(t2), vr(vO + r)))
    for g in range(4):
        k('v_cvt_pk_bf16_f32 %s, %s, %s' % (vr(vP + 2 * g), vr(vO + 4 * g), vr(vO + 4 * g + 1)))
        k('v_cvt_pk_bf16_f32 %s, %s, %s' % (vr(vP + 2 * g + 1), vr(vO + 4 * g + 2), vr(vO + 4 * g + 3)))
    for g in range(3):
        k('buffer_store_dwordx2 %s, %s, %s, 0 offen offset:%d' % (vr(vP + 2 * g, 2), vr(vOoff), sr(srdO, 4), g * 16))
    k('s_and_b64 exec, exec, 0xffffffff' if False else 's_mov_b32 exec_hi, 0')
    k('buffer_store_dwordx2 %s, %s, %s, 0 offen offset:48' % (vr(vP + 6, 2), vr(vOoff), sr(srdO, 4)))
    k.label('L_end_%s' % name)
    k('s_endpgm')
    k.lds = max(lds_total, 2 * 17 * 256)
    k.nwg = nwg
    return k
```

```python
from gemm import RA, vr, sr, make_srd, f32bits, SLOT, M_ROWS
import gemm


def _mn(ctx):
    return ctx['vM'], ctx['vN']

gemm.lane_mn = _mn
_old_make_srd = gemm.make_srd


def make_srd(k, srd, tmp, src, size):
    sK = getattr(k, 'sK', None)
    if sK is None:
        return _old_make_srd(k, srd, tmp, src, size)
    slot, off = src
    p = sK + SLOT[slot] // 4
    if off:
        k('s_add_u32 %s, %s, 0x%x' % (sr(srd), sr(p), off))
        k('s_addc_u32 %s, %s, 0' % (sr(srd + 1), sr(p + 1)))
        k('s_and_b32 %s, %s, 0xffff' % (sr(srd + 1), sr(srd + 1)))
    else:
        k('s_mov_b32 %s, %s' % (sr(srd), sr(p)))
        k('s_and_b32 %s, %s, 0xffff' % (sr(srd + 1), sr(p + 1)))
    k('s_mov_b32 %s, 0x%x' % (sr(srd + 2), size))
    k('s_mov_b32 %s, 0x00020000' % sr(srd + 3))

gemm.make_srd = make_srd


def preload_kernargs(k, s):
    sK = s.alloc(20, 4)
    k('s_load_dwordx16 %s, s[0:1], 0' % sr(sK, 16))
    k('s_load_dwordx4 %s, s[0:1], 64' % sr(sK + 16, 4))
    k.sK = sK


def epi_resid3(ctx, res, out):
    k = ctx['k']; v = ctx['v']
    t1, t2, t3, t4 = ctx['t']
    N = ctx['N']
    assert ctx['TM'] == 1 and ctx['TN'] == 1
    a = ctx['acc'][0][0][0]
    vR = ctx['vRes']; vOff = ctx['vOffR']
    P = v.alloc(4, 4)
    for gp in range(2):
        for i in range(4):
            k('v_cvt_pk_bf16_f32 %s, %s, %s' % (vr(P + i), vr(a + 8 * gp + 2 * i), vr(a + 8 * gp + 2 * i + 1)))
        k('v_permlane32_swap_b32 %s, %s' % (vr(P), vr(P + 2)))
        k('v_permlane32_swap_b32 %s, %s' % (vr(P + 1), vr(P + 3)))
        r = vR + 4 * gp
        for i in range(4):
            k('v_lshlrev_b32 %s, 16, %s' % (vr(t2), vr(P + i)))
            k('v_and_b32 %s, 0xffff0000, %s' % (vr(t1), vr(P + i)))
            k('v_lshlrev_b32 %s, 16, %s' % (vr(t3), vr(r + i)))
            k('v_and_b32 %s, 0xffff0000, %s' % (vr(t4), vr(r + i)))
            k('v_add_f32 %s, %s, %s' % (vr(t2), vr(t2), vr(t3)))
            k('v_add_f32 %s, %s, %s' % (vr(t1), vr(t1), vr(t4)))
            k('v_cvt_pk_bf16_f32 %s, %s, %s' % (vr(r + i), vr(t2), vr(t1)))
        k('buffer_store_dwordx4 %s, %s, %s, 0 offen offset:%d' % (vr(r, 4), vr(vOff), sr(ctx['srdO'], 4), gp * 32))


def pre_resid3(ctx, res, out):
    k = ctx['k']; v = ctx['v']
    t1, t2, t3, t4 = ctx['t']
    N = ctx['N']
    make_srd(k, ctx['srdO'], ctx['sTmp'], out, M_ROWS * N * 2)
    make_srd(k, ctx['srdR'], ctx['sTmp'], res, M_ROWS * N * 2)
    vM, vN = _mn(ctx)
    vOff = v.alloc(); vR = v.alloc(8, 4)
    k('v_lshrrev_b32 %s, 5, %s' % (vr(t1), vr(ctx['vLane'])))
    k('v_lshl_add_u32 %s, %s, 2, %s' % (vr(t1), vr(t1), vr(vN)))
    k('v_mul_u32_u24 %s, %d, %s' % (vr(vOff), N * 2, vr(vM)))
    k('v_lshl_add_u32 %s, %s, 1, %s' % (vr(vOff), vr(t1), vr(vOff)))
    for gp in range(2):
        k('buffer_load_dwordx4 %s, %s, %s, 0 offen offset:%d' % (vr(vR + 4 * gp, 4), vr(vOff), sr(ctx['srdR'], 4), gp * 32))
    ctx['vRes'] = vR; ctx['vOffR'] = vOff

epi_resid3.pre = pre_resid3


def apply_alg(ctx, R, w, nb, mb, g):
    al = ctx.get('alg')
    if not al:
        return
    k = ctx['k']
    for h in range(2):
        k('v_pk_fma_f32 %s, %s, %s, %s' % (vr(R + 2 * h, 2), vr(al['vCs'][w][nb][g] + 2 * h, 2),
                                          vr(al['vNM'] + 2 * mb, 2), vr(R + 2 * h, 2)))
    for h in range(2):
        k('v_pk_mul_f32 %s, %s, %s' % (vr(R + 2 * h, 2), vr(R + 2 * h, 2), vr(al['vRS'] + 2 * mb, 2)))


def colsum_side(k, base, name):
    out = ('ws', 0x1400000)
    k('s_sub_u32 s3, s2, %d' % base)
    k('s_cmp_ge_u32 s3, 77')
    k('s_cbranch_scc1 L_send_%s' % name)
    k('s_load_dwordx2 s[4:5], s[0:1], 8')
    k('s_load_dwordx2 s[6:7], s[0:1], 32')
    k('s_load_dwordx2 s[8:9], s[0:1], 40')
    k('s_load_dwordx2 s[24:25], s[0:1], 72')
    k('s_waitcnt lgkmcnt(0)')
    k('s_mov_b32 s10, s3')
    k('s_mov_b32 s11, 2688')
    k('s_mov_b32 s12, 0')
    k('s_cmp_lt_u32 s3, 21')
    k('s_cbranch_scc1 L_sel_%s' % name)
    k('s_mov_b32 s4, s6'); k('s_mov_b32 s5, s7')
    k('s_sub_u32 s10, s3, 21'); k('s_mov_b32 s11, 3584'); k('s_mov_b32 s12, 1344')
    k('s_cmp_lt_u32 s3, 49')
    k('s_cbranch_scc1 L_sel_%s' % name)
    k('s_mov_b32 s4, s8'); k('s_mov_b32 s5, s9')
    k('s_sub_u32 s10, s3, 49'); k('s_mov_b32 s12, 3136')
    k.label('L_sel_%s' % name)
    k('s_mov_b32 s16, s4'); k('s_and_b32 s17, s5, 0xffff')
    k('s_mul_i32 s18, s11, 448'); k('s_mov_b32 s19, 0x00020000')
    k('s_add_u32 s20, s24, 0x%x' % out[1])
    k('s_addc_u32 s21, s25, 0')
    k('s_and_b32 s21, s21, 0xffff')
    k('s_mov_b32 s22, %d' % (4928 * 4))
    k('s_mov_b32 s23, 0x00020000')
    k('v_and_b32 v1, 31, v0')
    k('v_lshrrev_b32 v2, 5, v0')
    k('v_mul_u32_u24 v3, 56, v2')
    k('v_mul_lo_u32 v3, v3, s11')
    k('s_lshl_b32 s13, s10, 7')
    k('v_lshl_add_u32 v3, v1, 2, v3')
    k('v_add_u32 v3, s13, v3')
    k('v_mov_b32 v4, 0'); k('v_mov_b32 v5, 0')
    k('s_mov_b32 s14, 0')
    for r in range(56):
        k('buffer_load_dword v%d, v3, s[16:19], s14 offen' % (8 + r))
        k('s_add_u32 s14, s14, s11')
    for r in range(56):
        k('v_lshlrev_b32 v6, 16, v%d' % (8 + r))
        k('v_and_b32 v7, 0xffff0000, v%d' % (8 + r))
        k('v_add_f32 v4, v4, v6')
        k('v_add_f32 v5, v5, v7')
    k('v_lshlrev_b32 v6, 8, v2')
    k('v_lshl_add_u32 v6, v1, 3, v6')
    k('ds_write_b64 v6, v[4:5]')
    k('s_waitcnt lgkmcnt(0)')
    k('s_barrier')
    k('v_cmp_gt_u32 vcc, 64, v0')
    k('s_and_saveexec_b64 s[26:27], vcc')
    k('s_cbranch_execz L_send_%s' % name)
    k('v_lshlrev_b32 v6, 2, v0')
    for g in range(8):
        k('ds_read_b32 v%d, v6 offset:%d' % (8 + g, g * 256))
    k('v_add_f32 v4, v8, v9')
    for g in range(2, 8):
        k('v_add_f32 v4, v4, v%d' % (8 + g))
    k('s_lshl_b32 s13, s10, 6')
    k('s_add_u32 s13, s13, s12')
    k('v_add_u32 v6, s13, v0')
    k('v_lshlrev_b32 v6, 2, v6')
    k('buffer_store_dword v4, v6, s[20:23], 0 offen')
    k.label('L_send_%s' % name)
    k('s_endpgm')
    return 77


def epi_swiglu3(ctx, out):
    k = ctx['k']; v = ctx['v']
    N = ctx['N']
    make_srd(k, ctx['srdO'], ctx['sTmp'], out, M_ROWS * N * 2)
    vM, vN = _mn(ctx)
    vOff = v.alloc()
    k('v_mul_u32_u24 %s, %d, %s' % (vr(vOff), N * 2, vr(vM)))
    k('v_lshl_add_u32 %s, %s, 1, %s' % (vr(vOff), vr(vN), vr(vOff)))
    TM, TN = ctx['TM'], ctx['TN']
    vOffs = [vOff]
    for mb in range(1, TM):
        r = v.alloc()
        k('v_add_u32 %s, %d, %s' % (vr(r), mb * 32 * N * 2, vr(vOff)))
        vOffs.append(r)
    cL = v.alloc(2, 2); c1 = v.alloc(2, 2)
    k('v_mov_b32 %s, 0x%08x' % (vr(cL), f32bits(-1.4426950408889634)))
    k('v_mov_b32 %s, 0x%08x' % (vr(cL + 1), f32bits(-1.4426950408889634)))
    k('v_mov_b32 %s, 1.0' % vr(c1)); k('v_mov_b32 %s, 1.0' % vr(c1 + 1))
    sets = []
    for i in range(2):
        sets.append((v.alloc(4, 2), v.alloc(4, 2), v.alloc(4, 2)))
    RR = [v.alloc(4, 4) for _ in range(2)]
    t1 = ctx['t'][0]
    k('v_lshrrev_b32 %s, 5, %s' % (vr(t1), vr(ctx['vLane'])))
    k('v_lshlrev_b32 %s, 3, %s' % (vr(t1), vr(t1)))
    for mb in range(TM):
        k('v_add_u32 %s, %s, %s' % (vr(vOffs[mb]), vr(vOffs[mb]), vr(t1)))
    it = 0
    for nb in range(TN):
        for mb in range(TM):
            ag = ctx['acc'][0][nb][mb]
            au = ctx['acc'][1][nb][mb]
            for g in range(4):
                G, U, T = sets[it & 1]
                R4 = RR[(it >> 1) & 1]
                R = R4 + 2 * (g & 1)
                it += 1
                if ctx['agpr']:
                    for e in range(4):
                        k('v_accvgpr_read_b32 %s, a%d' % (vr(G + e), ag + 4 * g + e))
                    for e in range(4):
                        k('v_accvgpr_read_b32 %s, a%d' % (vr(U + e), au + 4 * g + e))
                else:
                    G = ag + 4 * g; U = au + 4 * g
                apply_alg(ctx, G, 0, nb, mb, g)
                apply_alg(ctx, U, 1, nb, mb, g)
                for h in range(2):
                    k('v_pk_mul_f32 %s, %s, %s' % (vr(T + 2 * h, 2), vr(G + 2 * h, 2), vr(cL, 2)))
                for e in range(4):
                    k('v_exp_f32 %s, %s' % (vr(T + e), vr(T + e)))
                for h in range(2):
                    k('v_pk_add_f32 %s, %s, %s' % (vr(T + 2 * h, 2), vr(T + 2 * h, 2), vr(c1, 2)))
                for h in range(2):
                    k('v_pk_mul_f32 %s, %s, %s' % (vr(U + 2 * h, 2), vr(G + 2 * h, 2), vr(U + 2 * h, 2)))
                for e in range(4):
                    k('v_rcp_f32 %s, %s' % (vr(T + e), vr(T + e)))
                for h in range(2):
                    k('v_pk_mul_f32 %s, %s, %s' % (vr(U + 2 * h, 2), vr(U + 2 * h, 2), vr(T + 2 * h, 2)))
                for h in range(2):
                    k('v_cvt_pk_bf16_f32 %s, %s, %s' % (vr(R + h), vr(U + 2 * h), vr(U + 2 * h + 1)))
                if g & 1:
                    k('v_permlane32_swap_b32 %s, %s' % (vr(R4), vr(R4 + 2)))
                    k('v_permlane32_swap_b32 %s, %s' % (vr(R4 + 1), vr(R4 + 3)))
                    k('buffer_store_dwordx4 %s, %s, %s, 0 offen offset:%d' %
                      (vr(R4, 4), vr(vOffs[mb]), sr(ctx['srdO'], 4), nb * 64 + (g - 1) * 16))


def epi_qkv3(ctx, qkv):
    k = ctx['k']; v = ctx['v']; s = ctx['s']
    t1, t2, t3, t4 = ctx['t']
    name = ctx['name']
    make_srd(k, ctx['srdO'], ctx['sTmp'], qkv, 3 * 16 * 2048 * 64)
    vM, vN = _mn(ctx)
    TM, TN = ctx['TM'], ctx['TN']
    assert TM == 1
    sE = s.alloc(2, 2)
    PP = [v.alloc(4, 4) for _ in range(2)]
    vOff = [v.alloc() for _ in range(2)]
    vOff2 = v.alloc()
    vN4 = v.alloc()
    k('v_lshrrev_b32 %s, 2, %s' % (vr(vN4), vr(vN)))
    k('v_lshrrev_b32 %s, 5, %s' % (vr(t1), vr(ctx['vLane'])))
    k('v_add_u32 %s, %s, %s' % (vr(vN4), vr(vN4), vr(t1)))
    it = 0
    for nb in range(TN):
        a = ctx['acc'][0][nb][0]
        for gp in range(2):
            P = PP[it & 1]; vo = vOff[it & 1]; it += 1
            for i in range(4):
                k('v_cvt_pk_bf16_f32 %s, %s, %s' % (vr(P + i), vr(a + 8 * gp + 2 * i), vr(a + 8 * gp + 2 * i + 1)))
            k('v_add_u32 %s, %d, %s' % (vr(t1), nb * 8 + 4 * gp, vr(vN4)))
            k('v_mul_u32_u24 %s, 0x%x, %s' % (vr(t2), 9363, vr(t1)))
            k('v_lshrrev_b32 %s, 16, %s' % (vr(t2), vr(t2)))
            k('v_mul_u32_u24 %s, 7, %s' % (vr(t3), vr(t2)))
            k('v_sub_u32 %s, %s, %s' % (vr(t3), vr(t1), vr(t3)))
            k('v_lshlrev_b32 %s, 17, %s' % (vr(t2), vr(t2)))
            k('v_lshl_add_u32 %s, %s, 6, %s' % (vr(t2), vr(vM), vr(t2)))
            k('v_lshl_add_u32 %s, %s, 3, %s' % (vr(vo), vr(t3), vr(t2)))
            k('v_permlane32_swap_b32 %s, %s' % (vr(P), vr(P + 2)))
            k('v_permlane32_swap_b32 %s, %s' % (vr(P + 1), vr(P + 3)))
            k('buffer_store_dwordx4 %s, %s, %s, 0 offen' % (vr(P, 4), vr(vo), sr(ctx['srdO'], 4)))
            k('v_add_u32 %s, 0x20000, %s' % (vr(vOff2), vr(t2)))
            k('v_cmp_eq_u32 vcc, 6, %s' % vr(t3))
            k('s_and_saveexec_b64 %s, vcc' % sr(sE, 2))
            k('s_cbranch_execz L_q%d_%s' % (it, name))
            k('buffer_store_dwordx2 %s, %s, %s, 0 offen' % (vr(P + 2, 2), vr(vOff2), sr(ctx['srdO'], 4)))
            k.label('L_q%d_%s' % (it, name))
            k('s_mov_b64 exec, %s' % sr(sE, 2))
```

```python
from asmlib import Kernel
from gemm import RA, vr, sr, f32bits, SLOT, M_ROWS
import epi3
from epi3 import make_srd, preload_kernargs


def ar(b, n=1):
    return 'a%d' % b if n == 1 else 'a[%d:%d]' % (b, b + n - 1)


def gemm_kernel(name, K, N, BM, BN, A, Ws, epi, mode='tile', WM=2, WN=2, BK=64, NS=3, D=3, ln=False,
                GM=8, GN=1, epi_args=None, agpr=False, stamp_wg=None, abl='', alg=None, side=None):
    k = Kernel(name)
    NC = K // BK
    NW = len(Ws)
    NTM = M_ROWS // BM
    NTN = N // BN
    nwg = NTM * NTN
    lda = K * 2
    ldw = N * 2
    PA = BK * 2 + 16
    PW = BN * 2 + (64 if (BN * 2) % 128 == 0 else 0)
    assert PW % 256 in (64, 192), PW
    szA = BM * PA
    szW = BK * PW
    szS = szA + NW * szW
    lds_total = NS * szS
    if mode == 'tile':
        assert WM * WN == 4
        TM = BM // WM // 32
        TN = BN // WN // 32
        NST = BK // 16
        KMUL = 1
    else:
        TM = BM // 32
        TN = BN // 32
        assert TM * TN == 4
        NST = BK // 64
        KMUL = 4
        lds_total = max(lds_total, 4 * 4 * 4096)
    offSt = lds_total
    if alg:
        lds_total += BM * 8
    LPR = BK * 2 // 16
    XROWS = 256 // LPR
    APT = BM // XROWS
    PPR = BN * 2 // 16
    WPT = BK * PPR // 256
    assert BK * PPR % 256 == 0
    uniform_w = (256 % PPR == 0)
    D = min(D, NC)
    assert D >= NS - 1

    s = RA(4, 100)
    v = RA(1, 256)
    sTmp = s.alloc(2, 2)
    srdA = s.alloc(4, 4)
    srdW = [s.alloc(4, 4) for _ in range(NW)]
    srdO = s.alloc(4, 4)
    srdR = s.alloc(4, 4)
    sTm = s.alloc(); sTn = s.alloc(); sWoff = s.alloc(); sT2 = s.alloc(); sT3 = s.alloc(); sT4 = s.alloc()
    sArow = [s.alloc() for _ in range(APT)]

    stamps = []
    def stamp():
        if stamp_wg is None:
            return
        r = s.alloc(2, 2)
        stamps.append(r)
        k('s_memtime %s' % sr(r, 2))
        k('s_waitcnt lgkmcnt(0)')
    stamp()
    preload_kernargs(k, s)
    k('s_cmp_ge_u32 s2, %d' % nwg)
    k('s_cbranch_scc1 L_%s_%s' % ('side' if side else 'end', name))
    assert GM * GN == 8 and NTM % GM == 0 and NTN % GN == 0
    PM = NTM // GM; PN = NTN // GN
    magic = (1 << 32) // PN + 1
    k('s_lshr_b32 %s, s2, 3' % sr(sT3))
    k('s_and_b32 %s, s2, 7' % sr(sT4))
    if PN == 1:
        k('s_mov_b32 %s, %s' % (sr(sTm), sr(sT3)))
        k('s_mov_b32 %s, 0' % sr(sTn))
    else:
        k('s_mul_hi_u32 %s, %s, 0x%x' % (sr(sTm), sr(sT3), magic))
        k('s_mul_i32 %s, %s, %d' % (sr(sT2), sr(sTm), PN))
        k('s_sub_u32 %s, %s, %s' % (sr(sTn), sr(sT3), sr(sT2)))
    k('s_and_b32 %s, %s, %d' % (sr(sT2), sr(sT4), GM - 1))
    k('s_mul_i32 %s, %s, %d' % (sr(sT2), sr(sT2), PM))
    k('s_add_u32 %s, %s, %s' % (sr(sTm), sr(sTm), sr(sT2)))
    k('s_lshr_b32 %s, %s, %d' % (sr(sT2), sr(sT4), GM.bit_length() - 1))
    k('s_mul_i32 %s, %s, %d' % (sr(sT2), sr(sT2), PN))
    k('s_add_u32 %s, %s, %s' % (sr(sTn), sr(sTn), sr(sT2)))

    k('s_waitcnt lgkmcnt(0)')
    make_srd(k, srdA, sTmp, A, M_ROWS * lda)
    for i in range(NW):
        make_srd(k, srdW[i], sTmp, Ws[i], K * ldw)
    for j in range(APT):
        k('s_mov_b32 %s, %d' % (sr(sArow[j]), j * XROWS * lda))

    vLane = v.alloc(); vWave = v.alloc()
    k('v_and_b32 %s, 63, v0' % vr(vLane))
    k('v_lshrrev_b32 %s, 6, v0' % vr(vWave))
    t1 = v.alloc(); t2 = v.alloc(); t3 = v.alloc(); t4 = v.alloc()
    vAg = v.alloc(); vAst = v.alloc()
    sh = LPR.bit_length() - 1
    k('v_lshrrev_b32 %s, %d, v0' % (vr(t1), sh))
    k('v_and_b32 %s, %d, v0' % (vr(t2), LPR - 1))
    k('v_lshlrev_b32 %s, 4, %s' % (vr(t2), vr(t2)))
    k('s_mul_i32 %s, %s, %d' % (sr(sT2), sr(sTm), BM * lda))
    k('v_mul_u32_u24 %s, %d, %s' % (vr(vAg), lda, vr(t1)))
    k('v_add3_u32 %s, %s, %s, %s' % (vr(vAg), vr(vAg), vr(t2), sr(sT2)))
    k('v_mul_u32_u24 %s, %d, %s' % (vr(vAst), PA, vr(t1)))
    k('v_add_u32 %s, %s, %s' % (vr(vAst), vr(vAst), vr(t2)))
    k('s_mul_i32 %s, %s, %d' % (sr(sT2), sr(sTn), BN * 2))
    if uniform_w:
        nadr = 1
        WROWS = 256 // PPR
    else:
        nadr = WPT
    vWg = [v.alloc() for _ in range(nadr)]
    vWst = [v.alloc() for _ in range(nadr)]
    for j in range(nadr):
        if uniform_w:
            k('v_lshrrev_b32 %s, %d, v0' % (vr(t1), PPR.bit_length() - 1))
            k('v_and_b32 %s, %d, v0' % (vr(t2), PPR - 1))
        else:
            k('v_add_u32 %s, %d, v0' % (vr(t3), 256 * j))
            mg = (1 << 20) // PPR + 1
            assert all(((p * mg) >> 20) == p // PPR for p in range(256 * WPT))
            k('v_mul_u32_u24 %s, 0x%x, %s' % (vr(t1), mg, vr(t3)))
            k('v_lshrrev_b32 %s, 20, %s' % (vr(t1), vr(t1)))
            k('v_mul_u32_u24 %s, %d, %s' % (vr(t2), PPR, vr(t1)))
            k('v_sub_u32 %s, %s, %s' % (vr(t2), vr(t3), vr(t2)))
        k('v_lshlrev_b32 %s, 4, %s' % (vr(t2), vr(t2)))
        k('v_mul_u32_u24 %s, %d, %s' % (vr(vWg[j]), ldw, vr(t1)))
        k('v_add3_u32 %s, %s, %s, %s' % (vr(vWg[j]), vr(vWg[j]), vr(t2), sr(sT2)))
        k('v_mul_u32_u24 %s, %d, %s' % (vr(vWst[j]), PW, vr(t1)))
        k('v_add_u32 %s, %s, %s' % (vr(vWst[j]), vr(vWst[j]), vr(t2)))
        k('v_add_u32 %s, %d, %s' % (vr(vWst[j]), szA, vr(vWst[j])))
    vXa = v.alloc(); vWa = v.alloc()
    if mode == 'tile':
        k('v_lshrrev_b32 %s, %d, %s' % (vr(t1), WN.bit_length() - 1, vr(vWave)))
        k('v_and_b32 %s, %d, %s' % (vr(t2), WN - 1, vr(vWave)))
        k('v_mul_u32_u24 %s, %d, %s' % (vr(t1), BM // WM, vr(t1)))
        k('v_and_b32 %s, 31, %s' % (vr(t3), vr(vLane)))
        k('v_add_u32 %s, %s, %s' % (vr(t3), vr(t3), vr(t1)))
    else:
        k('v_and_b32 %s, 31, %s' % (vr(t3), vr(vLane)))
    k('v_mul_u32_u24 %s, %d, %s' % (vr(vXa), PA, vr(t3)))
    k('v_lshrrev_b32 %s, 5, %s' % (vr(t4), vr(vLane)))
    k('v_lshlrev_b32 %s, 4, %s' % (vr(t4), vr(t4)))
    k('v_add_u32 %s, %s, %s' % (vr(vXa), vr(vXa), vr(t4)))
    if mode != 'tile':
        k('v_lshl_add_u32 %s, %s, 5, %s' % (vr(vXa), vr(vWave), vr(vXa)))
    k('v_lshrrev_b32 %s, 5, %s' % (vr(t1), vr(vLane)))
    k('v_lshlrev_b32 %s, 3, %s' % (vr(t1), vr(t1)))
    k('v_bfe_u32 %s, %s, 2, 2' % (vr(t3), vr(vLane)))
    k('v_add_u32 %s, %s, %s' % (vr(t1), vr(t1), vr(t3)))
    if mode != 'tile':
        k('v_lshl_add_u32 %s, %s, 4, %s' % (vr(t1), vr(vWave), vr(t1)))
    k('v_mul_u32_u24 %s, %d, %s' % (vr(vWa), PW, vr(t1)))
    k('v_bfe_u32 %s, %s, 4, 1' % (vr(t3), vr(vLane)))
    k('v_lshlrev_b32 %s, 5, %s' % (vr(t3), vr(t3)))
    k('v_and_b32 %s, 3, %s' % (vr(t4), vr(vLane)))
    k('v_lshlrev_b32 %s, 3, %s' % (vr(t4), vr(t4)))
    k('v_add3_u32 %s, %s, %s, %s' % (vr(vWa), vr(vWa), vr(t3), vr(t4)))
    if mode == 'tile':
        k('v_mul_u32_u24 %s, %d, %s' % (vr(t2), BN // WN * 2, vr(t2)))
        k('v_add_u32 %s, %s, %s' % (vr(vWa), vr(vWa), vr(t2)))
    k('v_add_u32 %s, %d, %s' % (vr(vWa), szA, vr(vWa)))
    def staged(base):
        regs = [base]
        for st in range(1, NS):
            r = v.alloc()
            k('v_add_u32 %s, %d, %s' % (vr(r), st * szS, vr(base)))
            regs.append(r)
        return regs
    vXaS = staged(vXa); vWaS = staged(vWa); vAstS = staged(vAst)
    vWstS = [staged(r) for r in vWst]

    if ln:
        vAd = v.alloc(4 * APT * NC, 4)
    else:
        vAd = v.alloc(4 * APT * D, 4)
    vWd = [v.alloc(4 * WPT * D, 4) for _ in range(NW)]
    vXf = [v.alloc(4 * TM, 4) for _ in range(2)]
    vWf = [[v.alloc(4 * TN, 4) for _ in range(NW)] for _ in range(2)]
    if agpr:
        an = [0]
        def aalloc():
            r = an[0]; an[0] += 16; return r
        acc = [[[aalloc() for _ in range(TM)] for _ in range(TN)] for _ in range(NW)]
        accr = ar
    else:
        acc = [[[v.alloc(16, 4) for _ in range(TM)] for _ in range(TN)] for _ in range(NW)]
        accr = vr

    if alg:
        aS = v.alloc(APT); aQ = v.alloc(APT); aOnes = v.alloc()
        k('v_mov_b32 %s, 0x3f803f80' % vr(aOnes))
        for j in range(APT):
            k('v_mov_b32 %s, 0' % vr(aS + j)); k('v_mov_b32 %s, 0' % vr(aQ + j))
        vCs = [[[v.alloc(4, 4) for _ in range(4)] for _ in range(TN)] for _ in range(NW)]

    def load_A(c):
        out = []
        if ln:
            return out
        for j in range(APT):
            out.append('buffer_load_dwordx4 %s, %s, %s, %s offen offset:%d' %
                       (vr(vAd + 4 * ((c % D) * APT + j), 4), vr(vAg), sr(srdA, 4), sr(sArow[j]), c * BK * 2))
        return out

    def load_W(c):
        out = []
        for j in range(WPT):
            if uniform_w:
                pre = 's_mov_b32 %s, %d\n' % (sr(sWoff), (c * BK + j * WROWS) * ldw)
                adr = vWg[0]
            else:
                pre = 's_mov_b32 %s, %d\n' % (sr(sWoff), c * BK * ldw) if j == 0 else ''
                adr = vWg[j]
            for w in range(NW):
                out.append(pre + 'buffer_load_dwordx4 %s, %s, %s, %s offen' %
                           (vr(vWd[w] + 4 * ((c % D) * WPT + j), 4), vr(adr), sr(srdW[w], 4), sr(sWoff)))
                pre = ''
        return out

    ds_since_write = [0]

    def store_lds(c):
        out = []
        st = c % NS
        for j in range(APT):
            src = vAd + 4 * (((c % D) * APT + j) if not ln else (c * APT + j))
            pre = ''
            if ln:
                pre = normalize(c, j)
            if alg:
                for q in range(4):
                    pre += 'v_dot2_f32_bf16 %s, %s, %s, %s\n' % (vr(aS + j), vr(src + q), vr(aOnes), vr(aS + j))
                    pre += 'v_dot2_f32_bf16 %s, %s, %s, %s\n' % (vr(aQ + j), vr(src + q), vr(src + q), vr(aQ + j))
            out.append(pre + 'ds_write_b128 %s, %s offset:%d' % (vr(vAstS[st]), vr(src, 4), j * XROWS * PA))
        for w in range(NW):
            for j in range(WPT):
                if uniform_w:
                    out.append('ds_write_b128 %s, %s offset:%d' %
                               (vr(vWstS[0][st]), vr(vWd[w] + 4 * ((c % D) * WPT + j), 4), w * szW + j * WROWS * PW))
                else:
                    out.append('ds_write_b128 %s, %s offset:%d' %
                               (vr(vWstS[j][st]), vr(vWd[w] + 4 * ((c % D) * WPT + j), 4), w * szW))
        return out

    if ln:
        for c in range(NC):
            for j in range(APT):
                k('buffer_load_dwordx4 %s, %s, %s, %s offen offset:%d' %
                  (vr(vAd + 4 * (c * APT + j), 4), vr(vAg), sr(srdA, 4), sr(sArow[j]), c * BK * 2))
    else:
        for c in range(D):
            for x in load_A(c):
                k(x)
    for c in range(D):
        for x in load_W(c):
            k(x)

    if alg:
        assert mode == 'tile'
        srdC = s.alloc(4, 4)
        vCo = v.alloc()
        k('v_and_b32 %s, %d, %s' % (vr(t1), WN - 1, vr(vWave)))
        k('v_mul_u32_u24 %s, %d, %s' % (vr(t1), BN // WN, vr(t1)))
        k('v_lshrrev_b32 %s, 5, %s' % (vr(t2), vr(vLane)))
        k('v_lshlrev_b32 %s, 2, %s' % (vr(t2), vr(t2)))
        k('s_mul_i32 %s, %s, %d' % (sr(sT2), sr(sTn), BN))
        k('v_add3_u32 %s, %s, %s, %s' % (vr(vCo), vr(t1), vr(t2), sr(sT2)))
        k('v_lshlrev_b32 %s, 2, %s' % (vr(vCo), vr(vCo)))
        for w in range(NW):
            make_srd(k, srdC, sTmp, alg[w], N * 4)
            for nb in range(TN):
                for g in range(4):
                    k('buffer_load_dwordx4 %s, %s, %s, 0 offen offset:%d' %
                      (vr(vCs[w][nb][g], 4), vr(vCo), sr(srdC, 4), (nb * 32 + 8 * g) * 4))
    if ln:
        vS = v.alloc(APT); vQ = v.alloc(APT)
        vOnes = v.alloc()
        vR2 = v.alloc(2 * APT, 2); vC2 = v.alloc(2 * APT, 2)
        tp = v.alloc(2, 2)
        k('v_mov_b32 %s, 0x3f803f80' % vr(vOnes))
        for j in range(APT):
            k('v_mov_b32 %s, 0' % vr(vS + j)); k('v_mov_b32 %s, 0' % vr(vQ + j))
        for c in range(NC):
            for j in range(APT):
                for q in range(4):
                    x = vAd + 4 * (c * APT + j) + q
                    k('v_dot2_f32_bf16 %s, %s, %s, %s' % (vr(vS + j), vr(x), vr(vOnes), vr(vS + j)))
                    k('v_dot2_f32_bf16 %s, %s, %s, %s' % (vr(vQ + j), vr(x), vr(x), vr(vQ + j)))
        pms = ['quad_perm:[1,0,3,2]', 'quad_perm:[2,3,0,1]'] + (['row_half_mirror'] if LPR == 8 else [])
        assert LPR in (4, 8)
        for j in range(APT):
            for pm in pms:
                k('v_add_f32_dpp %s, %s, %s %s row_mask:0xf bank_mask:0xf' % (vr(t1), vr(vS + j), vr(vS + j), pm))
                k('v_add_f32_dpp %s, %s, %s %s row_mask:0xf bank_mask:0xf' % (vr(t2), vr(vQ + j), vr(vQ + j), pm))
                k('v_mov_b32 %s, %s' % (vr(vS + j), vr(t1)))
                k('v_mov_b32 %s, %s' % (vr(vQ + j), vr(t2)))
            S_ = vS + j; Q_ = vQ + j
            k('v_mul_f32 %s, 0x%08x, %s' % (vr(S_), f32bits(1.0 / K), vr(S_)))
            k('v_mul_f32 %s, 0x%08x, %s' % (vr(Q_), f32bits(1.0 / K), vr(Q_)))
            k('v_fma_f32 %s, -%s, %s, %s' % (vr(Q_), vr(S_), vr(S_), vr(Q_)))
            k('v_max_f32 %s, 0, %s' % (vr(Q_), vr(Q_)))
            k('v_cvt_pk_bf16_f32 %s, %s, %s' % (vr(t1), vr(S_), vr(Q_)))
            k('v_lshlrev_b32 %s, 16, %s' % (vr(S_), vr(t1)))
            k('v_and_b32 %s, 0xffff0000, %s' % (vr(Q_), vr(t1)))
            k('v_add_f32 %s, 0x%08x, %s' % (vr(Q_), f32bits(1e-5), vr(Q_)))
            k('v_cvt_pk_bf16_f32 %s, %s, %s' % (vr(t1), vr(Q_), vr(Q_)))
            k('v_lshlrev_b32 %s, 16, %s' % (vr(Q_), vr(t1)))
            k('v_sqrt_f32 %s, %s' % (vr(Q_), vr(Q_)))
            k('v_cvt_pk_bf16_f32 %s, %s, %s' % (vr(t1), vr(Q_), vr(Q_)))
            k('v_lshlrev_b32 %s, 16, %s' % (vr(Q_), vr(t1)))
            k('v_rcp_f32 %s, %s' % (vr(Q_), vr(Q_)))
            k('v_mov_b32 %s, %s' % (vr(vR2 + 2 * j), vr(Q_)))
            k('v_mov_b32 %s, %s' % (vr(vR2 + 2 * j + 1), vr(Q_)))
            k('v_mul_f32 %s, %s, %s' % (vr(vC2 + 2 * j), vr(S_), vr(Q_)))
            k('v_sub_f32 %s, 0, %s' % (vr(vC2 + 2 * j), vr(vC2 + 2 * j)))
            k('v_mov_b32 %s, %s' % (vr(vC2 + 2 * j + 1), vr(vC2 + 2 * j)))

        def normalize(c, j):
            txt = ''
            if 'nonorm' in abl:
                return txt
            for q in range(4):
                x = vAd + 4 * (c * APT + j) + q
                txt += 'v_lshlrev_b32 %s, 16, %s\n' % (vr(tp), vr(x))
                txt += 'v_and_b32 %s, 0xffff0000, %s\n' % (vr(tp + 1), vr(x))
                if 'pk' in abl:
                    txt += 'v_pk_fma_f32 %s, %s, %s, %s\n' % (vr(tp, 2), vr(tp, 2), vr(vR2 + 2 * j, 2), vr(vC2 + 2 * j, 2))
                else:
                    txt += 'v_fma_f32 %s, %s, %s, %s\n' % (vr(tp), vr(tp), vr(vR2 + 2 * j), vr(vC2 + 2 * j))
                    txt += 'v_fma_f32 %s, %s, %s, %s\n' % (vr(tp + 1), vr(tp + 1), vr(vR2 + 2 * j), vr(vC2 + 2 * j))
                txt += 'v_cvt_pk_bf16_f32 %s, %s, %s\n' % (vr(x), vr(tp), vr(tp + 1))
            return txt

    stamp()
    for c in range(min(NS - 1, NC)):
        for x in store_lds(c):
            k(x)
        if c + D < NC:
            for x in load_A(c + D) + load_W(c + D):
                k(x)
    k('s_waitcnt lgkmcnt(0)')
    k('s_barrier')
    stamp()

    def frag_reads(c, stp, fs):
        out = []
        st = c % NS
        ks = stp * KMUL
        for mb in range(TM):
            out.append('ds_read_b128 %s, %s offset:%d' %
                       (vr(vXf[fs] + 4 * mb, 4), vr(vXaS[st]), mb * 32 * PA + ks * 32))
        for w in range(NW):
            for nb in range(TN):
                base = w * szW + ks * 16 * PW + nb * 64
                r = vWf[fs][w] + 4 * nb
                out.append('ds_read_b64_tr_b16 %s, %s offset:%d' % (vr(r, 2), vr(vWaS[st]), base))
                out.append('ds_read_b64_tr_b16 %s, %s offset:%d' % (vr(r + 2, 2), vr(vWaS[st]), base + 4 * PW))
        return out

    def mfmas(fs, first):
        out = []
        for w in range(NW):
            for nb in range(TN):
                for mb in range(TM):
                    a = acc[w][nb][mb]
                    out.append('v_mfma_f32_32x32x16_bf16 %s, %s, %s, %s' %
                               (accr(a, 16), vr(vWf[fs][w] + 4 * nb, 4), vr(vXf[fs] + 4 * mb, 4),
                                '0' if first else accr(a, 16)))
        return out

    for x in frag_reads(0, 0, 0):
        k(x)
    fs = 0
    for c in range(NC):
        cw = c + NS - 1
        wl = []
        if cw < NC:
            wl = store_lds(cw)
            ll = (load_A(cw + D) + load_W(cw + D)) if cw + D < NC else []
            if 'noload' in abl:
                ll = []
            if 'nowrite' in abl:
                wl = []
            wl = wl + ll
        flat = []
        for x in wl:
            flat += [l for l in x.split('\n') if l.strip()]
        def cost(l):
            if l.startswith('ds_write'): return 13
            if l.startswith('buffer_'): return 12
            if l.startswith('s_'): return 1
            return 4
        tot = sum(cost(l) for l in flat)
        nds_after = 0
        pos = 0
        done = 0
        nm_tot = NST * NW * TM * TN
        mi = 0
        for stp in range(NST):
            rl = []
            last = (stp == NST - 1)
            if not last:
                rl = frag_reads(c, stp + 1, fs ^ 1)
            elif c + 1 < NC and NS >= 3:
                rl = frag_reads(c + 1, 0, fs ^ 1)
            ml = mfmas(fs, c == 0 and stp == 0)
            nm = len(ml)
            nr = max(1, nm - 1)
            for i, m in enumerate(ml):
                k(m)
                mi += 1
                out = rl[i * len(rl) // nr:(i + 1) * len(rl) // nr] if i < nr else []
                while pos < len(flat) and done < tot * mi / (0.8 * nm_tot):
                    out.append(flat[pos]); done += cost(flat[pos]); pos += 1
                for line in out:
                    k(line)
                    if line.startswith('ds_write'):
                        nds_after = 0
                    elif line.startswith('ds_'):
                        nds_after += 1
            fs ^= 1
        assert pos == len(flat)
        if cw < NC:
            k('s_waitcnt lgkmcnt(%d)' % min(nds_after, 15))
            k('s_barrier')
        if c + 1 < NC and NS < 3:
            for x in frag_reads(c + 1, 0, fs):
                k(x)

    stamp()
    if ln:
        v2 = RA(vAd, vAd + 4 * APT * NC)
    else:
        v2 = RA(vAd, vXf[0])
    vM = v2.alloc(); vN = v2.alloc()
    k('s_mul_i32 %s, %s, %d' % (sr(sT2), sr(sTm), BM))
    k('s_mul_i32 %s, %s, %d' % (sr(sT3), sr(sTn), BN))
    k('v_and_b32 %s, 31, %s' % (vr(t3), vr(vLane)))
    k('v_lshrrev_b32 %s, 5, %s' % (vr(t4), vr(vLane)))
    k('v_lshlrev_b32 %s, 2, %s' % (vr(t4), vr(t4)))
    if mode == 'tile':
        k('v_lshrrev_b32 %s, %d, %s' % (vr(t1), WN.bit_length() - 1, vr(vWave)))
        k('v_and_b32 %s, %d, %s' % (vr(t2), WN - 1, vr(vWave)))
        k('v_mul_u32_u24 %s, %d, %s' % (vr(t1), BM // WM, vr(t1)))
        k('v_mul_u32_u24 %s, %d, %s' % (vr(t2), BN // WN, vr(t2)))
    else:
        k('v_and_b32 %s, %d, %s' % (vr(t1), TM - 1, vr(vWave)))
        k('v_lshrrev_b32 %s, %d, %s' % (vr(t2), TM.bit_length() - 1, vr(vWave)))
        k('v_lshlrev_b32 %s, 5, %s' % (vr(t1), vr(t1)))
        k('v_lshlrev_b32 %s, 5, %s' % (vr(t2), vr(t2)))
    k('v_add3_u32 %s, %s, %s, %s' % (vr(vM), vr(t1), vr(t3), sr(sT2)))
    k('v_add3_u32 %s, %s, %s, %s' % (vr(vN), vr(t2), vr(t4), sr(sT3)))

    if alg:
        pms = ['quad_perm:[1,0,3,2]', 'quad_perm:[2,3,0,1]'] + (['row_half_mirror'] if LPR == 8 else [])
        vSt = v2.alloc(2, 2)
        k('v_lshrrev_b32 %s, %d, v0' % (vr(t3), LPR.bit_length() - 1))
        k('v_lshlrev_b32 %s, 3, %s' % (vr(t3), vr(t3)))
        k('v_add_u32 %s, %d, %s' % (vr(t3), offSt, vr(t3)))
        for j in range(APT):
            for pm in pms:
                k('v_add_f32_dpp %s, %s, %s %s row_mask:0xf bank_mask:0xf' % (vr(t1), vr(aS + j), vr(aS + j), pm))
                k('v_add_f32_dpp %s, %s, %s %s row_mask:0xf bank_mask:0xf' % (vr(t2), vr(aQ + j), vr(aQ + j), pm))
                k('v_mov_b32 %s, %s' % (vr(aS + j), vr(t1)))
                k('v_mov_b32 %s, %s' % (vr(aQ + j), vr(t2)))
            S_ = aS + j; Q_ = aQ + j
            k('v_mul_f32 %s, 0x%08x, %s' % (vr(S_), f32bits(1.0 / K), vr(S_)))
            k('v_mul_f32 %s, 0x%08x, %s' % (vr(Q_), f32bits(1.0 / K), vr(Q_)))
            k('v_fma_f32 %s, -%s, %s, %s' % (vr(Q_), vr(S_), vr(S_), vr(Q_)))
            k('v_max_f32 %s, 0, %s' % (vr(Q_), vr(Q_)))
            k('v_cvt_pk_bf16_f32 %s, %s, %s' % (vr(t1), vr(S_), vr(Q_)))
            k('v_lshlrev_b32 %s, 16, %s' % (vr(vSt), vr(t1)))
            k('v_and_b32 %s, 0xffff0000, %s' % (vr(Q_), vr(t1)))
            k('v_add_f32 %s, 0x%08x, %s' % (vr(Q_), f32bits(1e-5), vr(Q_)))
            k('v_cvt_pk_bf16_f32 %s, %s, %s' % (vr(t1), vr(Q_), vr(Q_)))
            k('v_lshlrev_b32 %s, 16, %s' % (vr(Q_), vr(t1)))
            k('v_sqrt_f32 %s, %s' % (vr(Q_), vr(Q_)))
            k('v_cvt_pk_bf16_f32 %s, %s, %s' % (vr(t1), vr(Q_), vr(Q_)))
            k('v_lshlrev_b32 %s, 16, %s' % (vr(Q_), vr(t1)))
            k('v_rcp_f32 %s, %s' % (vr(vSt + 1), vr(Q_)))
            k('ds_write_b64 %s, %s offset:%d' % (vr(t3), vr(vSt, 2), j * XROWS * 8))
        k('s_waitcnt lgkmcnt(0)')
        k('s_barrier')
        k('v_lshrrev_b32 %s, %d, %s' % (vr(t1), WN.bit_length() - 1, vr(vWave)))
        k('v_mul_u32_u24 %s, %d, %s' % (vr(t1), BM // WM, vr(t1)))
        k('v_and_b32 %s, 31, %s' % (vr(t2), vr(vLane)))
        k('v_add_lshl_u32 %s, %s, %s, 3' % (vr(t3), vr(t1), vr(t2)))
        k('v_add_u32 %s, %d, %s' % (vr(t3), offSt, vr(t3)))
        vMR = v2.alloc(2 * TM, 2)
        vNM = v2.alloc(2 * TM, 2); vRS = v2.alloc(2 * TM, 2)
        for mb in range(TM):
            k('ds_read_b64 %s, %s offset:%d' % (vr(vMR + 2 * mb, 2), vr(t3), mb * 32 * 8))
        for mb in range(TM):
            k('v_sub_f32 %s, 0, %s' % (vr(vNM + 2 * mb), vr(vMR + 2 * mb)))
            k('v_sub_f32 %s, 0, %s' % (vr(vNM + 2 * mb + 1), vr(vMR + 2 * mb)))
            k('v_mov_b32 %s, %s' % (vr(vRS + 2 * mb), vr(vMR + 2 * mb + 1)))
            k('v_mov_b32 %s, %s' % (vr(vRS + 2 * mb + 1), vr(vMR + 2 * mb + 1)))
        algc = dict(vNM=vNM, vRS=vRS, vCs=vCs)
    else:
        algc = None
    eacc = acc
    eTM, eTN = TM, TN
    ctx = dict(alg=algc, k=k, v=v2, s=s, BM=BM, BN=BN, vLane=vLane, vWave=vWave,
               sTm=sTm, sTn=sTn, sTmp=sTmp, srdO=srdO, srdR=srdR, t=(t1, t2, t3, t4), sT2=sT2, sT3=sT3,
               N=N, name=name, vM=vM, vN=vN, agpr=agpr)
    if hasattr(epi, 'pre'):
        epi.pre(ctx, **(epi_args or {}))
    if mode != 'tile':
        k('s_waitcnt lgkmcnt(0)')
        k('s_barrier')
        vRa = v2.alloc(); vRb = v2.alloc()
        k('v_lshlrev_b32 %s, 4, %s' % (vr(t1), vr(vLane)))
        k('v_lshl_add_u32 %s, %s, 14, %s' % (vr(vRa), vr(vWave), vr(t1)))
        k('v_lshl_add_u32 %s, %s, 12, %s' % (vr(vRb), vr(vWave), vr(t1)))
        for nb in range(TN):
            for mb in range(TM):
                a = acc[0][nb][mb]
                b = nb * TM + mb
                for q in range(4):
                    k('ds_write_b128 %s, %s offset:%d' % (vr(vRa), vr(a + 4 * q, 4), b * 4096 + q * 1024))
        k('s_waitcnt lgkmcnt(0)')
        k('s_barrier')
        vSum = [v.alloc(16, 4) for _ in range(4)]
        for srcw in range(4):
            for q in range(4):
                k('ds_read_b128 %s, %s offset:%d' % (vr(vSum[srcw] + 4 * q, 4), vr(vRb), srcw * 16384 + q * 1024))
        for r in range(0, 16, 2):
            k('v_pk_add_f32 %s, %s, %s' % (vr(vSum[0] + r, 2), vr(vSum[0] + r, 2), vr(vSum[1] + r, 2)))
            k('v_pk_add_f32 %s, %s, %s' % (vr(vSum[2] + r, 2), vr(vSum[2] + r, 2), vr(vSum[3] + r, 2)))
            k('v_pk_add_f32 %s, %s, %s' % (vr(vSum[0] + r, 2), vr(vSum[0] + r, 2), vr(vSum[2] + r, 2)))
        eacc = [[[vSum[0]]]]
        eTM = eTN = 1
    ctx.update(acc=eacc, TM=eTM, TN=eTN)
    epi(ctx, **(epi_args or {}))
    if stamp_wg is not None:
        stamp()
        k('s_waitcnt lgkmcnt(0) vmcnt(0)')
        stamp()
        k('s_cmp_eq_u32 s2, %d' % stamp_wg)
        k('s_cbranch_scc0 L_end_%s' % name)
        make_srd(k, srdO, sTmp, ('dbg', 0), 256)
        k('v_cmp_eq_u32 vcc, 0, v0')
        k('s_and_saveexec_b64 %s, vcc' % sr(sTmp, 2))
        k('s_cbranch_execz L_end_%s' % name)
        for i, r in enumerate(stamps[1:]):
            k('s_sub_u32 %s, %s, %s' % (sr(sT2), sr(r), sr(stamps[0])))
            k('v_mov_b32 %s, %s' % (vr(t1), sr(sT2)))
            k('v_mov_b32 %s, %d' % (vr(t2), 4 * i))
            k('buffer_store_dword %s, %s, %s, 0 offen' % (vr(t1), vr(t2), sr(srdO, 4)))
    k.label('L_end_%s' % name)
    k('s_endpgm')
    if side:
        k.label('L_side_%s' % name)
        k('s_waitcnt lgkmcnt(0)')
        nwg += side(k, nwg, name)
    k.lds = lds_total
    k.nwg = nwg
    return k
```

```python
from asmlib import Kernel
from gemm import RA, vr, sr, f32bits, SLOT, M_ROWS
import epi3
from epi3 import make_srd, preload_kernargs
from gemm3 import ar


def gemm_dw(name, K, N, BM, BN, A, Wt, epi, BK=64, NS=3, PD=6, GM=4, GN=2, epi_args=None, agpr=True,
            stamp_wg=None, abl=''):
    k = Kernel(name)
    NC = K // BK
    NW = len(Wt)
    NTM = M_ROWS // BM
    NTN = N // BN
    nwg = NTM * NTN
    lda = K * 2
    NKS = K // 16
    PA = BK * 2 + 16
    szS = BM * PA
    lds_total = NS * szS
    TM = BM // 32
    TN = BN // 128
    assert TN == 1
    NST = BK // 16
    LPR = BK * 2 // 16
    XROWS = 256 // LPR
    APT = BM // XROWS

    s = RA(4, 100)
    v = RA(1, 256)
    sTmp = s.alloc(2, 2)
    srdA = s.alloc(4, 4)
    srdW = [s.alloc(4, 4) for _ in range(NW)]
    srdO = s.alloc(4, 4)
    srdR = s.alloc(4, 4)
    sTm = s.alloc(); sTn = s.alloc(); sWoff = s.alloc(); sT2 = s.alloc(); sT3 = s.alloc(); sT4 = s.alloc()
    sArow = [s.alloc() for _ in range(APT)]
    stamps = []
    def stamp():
        if stamp_wg is None:
            return
        r = s.alloc(2, 2)
        stamps.append(r)
        k('s_memtime %s' % sr(r, 2))
        k('s_waitcnt lgkmcnt(0)')
    stamp()
    preload_kernargs(k, s)
    k('s_cmp_ge_u32 s2, %d' % nwg)
    k('s_cbranch_scc1 L_end_%s' % name)
    assert GM * GN == 8 and NTM % GM == 0 and NTN % GN == 0
    PM = NTM // GM; PN = NTN // GN
    magic = (1 << 32) // PN + 1
    k('s_lshr_b32 %s, s2, 3' % sr(sT3))
    k('s_and_b32 %s, s2, 7' % sr(sT4))
    k('s_mul_hi_u32 %s, %s, 0x%x' % (sr(sTm), sr(sT3), magic))
    k('s_mul_i32 %s, %s, %d' % (sr(sT2), sr(sTm), PN))
    k('s_sub_u32 %s, %s, %s' % (sr(sTn), sr(sT3), sr(sT2)))
    k('s_and_b32 %s, %s, %d' % (sr(sT2), sr(sT4), GM - 1))
    k('s_mul_i32 %s, %s, %d' % (sr(sT2), sr(sT2), PM))
    k('s_add_u32 %s, %s, %s' % (sr(sTm), sr(sTm), sr(sT2)))
    k('s_lshr_b32 %s, %s, %d' % (sr(sT2), sr(sT4), GM.bit_length() - 1))
    k('s_mul_i32 %s, %s, %d' % (sr(sT2), sr(sT2), PN))
    k('s_add_u32 %s, %s, %s' % (sr(sTn), sr(sTn), sr(sT2)))
    k('s_waitcnt lgkmcnt(0)')
    make_srd(k, srdA, sTmp, A, M_ROWS * lda)
    for i in range(NW):
        make_srd(k, srdW[i], sTmp, Wt[i], K * N * 2)
    for j in range(APT):
        k('s_mov_b32 %s, %d' % (sr(sArow[j]), j * XROWS * lda))

    vLane = v.alloc(); vWave = v.alloc()
    k('v_and_b32 %s, 63, v0' % vr(vLane))
    k('v_lshrrev_b32 %s, 6, v0' % vr(vWave))
    t1 = v.alloc(); t2 = v.alloc(); t3 = v.alloc(); t4 = v.alloc()
    vAg = v.alloc(); vAst = v.alloc()
    k('v_lshrrev_b32 %s, %d, v0' % (vr(t1), LPR.bit_length() - 1))
    k('v_and_b32 %s, %d, v0' % (vr(t2), LPR - 1))
    k('v_lshlrev_b32 %s, 4, %s' % (vr(t2), vr(t2)))
    k('s_mul_i32 %s, %s, %d' % (sr(sT2), sr(sTm), BM * lda))
    k('v_mul_u32_u24 %s, %d, %s' % (vr(vAg), lda, vr(t1)))
    k('v_add3_u32 %s, %s, %s, %s' % (vr(vAg), vr(vAg), vr(t2), sr(sT2)))
    k('v_mul_u32_u24 %s, %d, %s' % (vr(vAst), PA, vr(t1)))
    k('v_add_u32 %s, %s, %s' % (vr(vAst), vr(vAst), vr(t2)))
    vAd = v.alloc(4 * APT * NC, 4)
    for c in range(NC):
        for j in range(APT):
            k('buffer_load_dwordx4 %s, %s, %s, %s offen offset:%d' %
              (vr(vAd + 4 * (c * APT + j), 4), vr(vAg), sr(srdA, 4), sr(sArow[j]), c * BK * 2))
    vWg = v.alloc()
    k('s_lshl_b32 %s, %s, 2' % (sr(sT2), sr(sTn)))
    k('v_add_u32 %s, %s, %s' % (vr(t1), sr(sT2), vr(vWave)))
    k('v_mul_u32_u24 %s, %d, %s' % (vr(vWg), NKS * 1024, vr(t1)))
    k('v_lshl_add_u32 %s, %s, 4, %s' % (vr(vWg), vr(vLane), vr(vWg)))
    vWf = [[v.alloc(4, 4) for _ in range(NW)] for _ in range(PD)]

    def load_W(ks):
        out = []
        pre = ''
        if ks % 4 == 0:
            pre = 's_mov_b32 %s, %d\n' % (sr(sWoff), ks * 1024)
        for w in range(NW):
            out.append(pre + 'buffer_load_dwordx4 %s, %s, %s, %s offen offset:%d' %
                       (vr(vWf[ks % PD][w], 4), vr(vWg), sr(srdW[w], 4), sr(sWoff), (ks % 4) * 1024))
            pre = ''
        return out
    for ks in range(PD):
        for x in load_W(ks):
            k(x)

    vXa = v.alloc()
    k('v_and_b32 %s, 31, %s' % (vr(t3), vr(vLane)))
    k('v_mul_u32_u24 %s, %d, %s' % (vr(vXa), PA, vr(t3)))
    k('v_lshrrev_b32 %s, 5, %s' % (vr(t4), vr(vLane)))
    k('v_lshlrev_b32 %s, 4, %s' % (vr(t4), vr(t4)))
    k('v_add_u32 %s, %s, %s' % (vr(vXa), vr(vXa), vr(t4)))
    def staged(base):
        regs = [base]
        for st in range(1, NS):
            r = v.alloc()
            k('v_add_u32 %s, %d, %s' % (vr(r), st * szS, vr(base)))
            regs.append(r)
        return regs
    vXaS = staged(vXa); vAstS = staged(vAst)
    vXf = [v.alloc(4 * TM, 4) for _ in range(2)]
    an = [0]
    def aalloc():
        r = an[0]; an[0] += 16; return r
    acc = [[[aalloc() for _ in range(TM)] for _ in range(TN)] for _ in range(NW)]

    vS = v.alloc(APT); vQ = v.alloc(APT)
    vOnes = v.alloc()
    vR = v.alloc(APT); vC = v.alloc(APT)
    tp = v.alloc(2, 2)
    k('v_mov_b32 %s, 0x3f803f80' % vr(vOnes))
    for j in range(APT):
        k('v_mov_b32 %s, 0' % vr(vS + j)); k('v_mov_b32 %s, 0' % vr(vQ + j))
    for c in range(NC):
        for j in range(APT):
            for q in range(4):
                x = vAd + 4 * (c * APT + j) + q
                k('v_dot2_f32_bf16 %s, %s, %s, %s' % (vr(vS + j), vr(x), vr(vOnes), vr(vS + j)))
                k('v_dot2_f32_bf16 %s, %s, %s, %s' % (vr(vQ + j), vr(x), vr(x), vr(vQ + j)))
    pms = ['quad_perm:[1,0,3,2]', 'quad_perm:[2,3,0,1]'] + (['row_half_mirror'] if LPR == 8 else [])
    for j in range(APT):
        for pm in pms:
            k('v_add_f32_dpp %s, %s, %s %s row_mask:0xf bank_mask:0xf' % (vr(t1), vr(vS + j), vr(vS + j), pm))
            k('v_add_f32_dpp %s, %s, %s %s row_mask:0xf bank_mask:0xf' % (vr(t2), vr(vQ + j), vr(vQ + j), pm))
            k('v_mov_b32 %s, %s' % (vr(vS + j), vr(t1)))
            k('v_mov_b32 %s, %s' % (vr(vQ + j), vr(t2)))
        S_ = vS + j; Q_ = vQ + j
        k('v_mul_f32 %s, 0x%08x, %s' % (vr(S_), f32bits(1.0 / K), vr(S_)))
        k('v_mul_f32 %s, 0x%08x, %s' % (vr(Q_), f32bits(1.0 / K), vr(Q_)))
        k('v_fma_f32 %s, -%s, %s, %s' % (vr(Q_), vr(S_), vr(S_), vr(Q_)))
        k('v_max_f32 %s, 0, %s' % (vr(Q_), vr(Q_)))
        k('v_cvt_pk_bf16_f32 %s, %s, %s' % (vr(t1), vr(S_), vr(Q_)))
        k('v_lshlrev_b32 %s, 16, %s' % (vr(S_), vr(t1)))
        k('v_and_b32 %s, 0xffff0000, %s' % (vr(Q_), vr(t1)))
        k('v_add_f32 %s, 0x%08x, %s' % (vr(Q_), f32bits(1e-5), vr(Q_)))
        k('v_cvt_pk_bf16_f32 %s, %s, %s' % (vr(t1), vr(Q_), vr(Q_)))
        k('v_lshlrev_b32 %s, 16, %s' % (vr(Q_), vr(t1)))
        k('v_sqrt_f32 %s, %s' % (vr(Q_), vr(Q_)))
        k('v_cvt_pk_bf16_f32 %s, %s, %s' % (vr(t1), vr(Q_), vr(Q_)))
        k('v_lshlrev_b32 %s, 16, %s' % (vr(Q_), vr(t1)))
        k('v_rcp_f32 %s, %s' % (vr(vR + j), vr(Q_)))
        k('v_mul_f32 %s, %s, %s' % (vr(vC + j), vr(S_), vr(vR + j)))
        k('v_sub_f32 %s, 0, %s' % (vr(vC + j), vr(vC + j)))

    def store_lds(c):
        out = []
        st = c % NS
        for j in range(APT):
            src = vAd + 4 * (c * APT + j)
            for q in range(4):
                x = src + q
                out.append('v_lshlrev_b32 %s, 16, %s' % (vr(tp), vr(x)))
                out.append('v_and_b32 %s, 0xffff0000, %s' % (vr(tp + 1), vr(x)))
                out.append('v_fma_f32 %s, %s, %s, %s' % (vr(tp), vr(tp), vr(vR + j), vr(vC + j)))
                out.append('v_fma_f32 %s, %s, %s, %s' % (vr(tp + 1), vr(tp + 1), vr(vR + j), vr(vC + j)))
                out.append('v_cvt_pk_bf16_f32 %s, %s, %s' % (vr(x), vr(tp), vr(tp + 1)))
            out.append('ds_write_b128 %s, %s offset:%d' % (vr(vAstS[st]), vr(src, 4), j * XROWS * PA))
        return out
    stamp()
    for c in range(min(NS - 1, NC)):
        for x in store_lds(c):
            k(x)
    k('s_waitcnt lgkmcnt(0)')
    k('s_barrier')
    stamp()

    def frag_reads(c, stp, fs):
        st = c % NS
        return ['ds_read_b128 %s, %s offset:%d' % (vr(vXf[fs] + 4 * mb, 4), vr(vXaS[st]), mb * 32 * PA + stp * 32)
                for mb in range(TM)]

    for x in frag_reads(0, 0, 0):
        k(x)
    fs = 0
    def cost(l):
        if l.startswith('ds_write'): return 13
        if l.startswith('buffer_'): return 12
        if l.startswith('s_'): return 1
        return 4
    for c in range(NC):
        cw = c + NS - 1
        flat = store_lds(cw) if cw < NC else []
        tot = sum(cost(l) for l in flat)
        nds_after = 0
        pos = 0; done = 0; mi = 0
        nm_tot = NST * NW * TM
        for stp in range(NST):
            ks = c * NST + stp
            rl = []
            if stp < NST - 1:
                rl = frag_reads(c, stp + 1, fs ^ 1)
            elif c + 1 < NC:
                rl = frag_reads(c + 1, 0, fs ^ 1)
            ml = []
            for w in range(NW):
                for mb in range(TM):
                    a = acc[w][0][mb]
                    ml.append('v_mfma_f32_32x32x16_bf16 %s, %s, %s, %s' %
                              (ar(a, 16), vr(vWf[ks % PD][w], 4), vr(vXf[fs] + 4 * mb, 4), '0' if ks == 0 else ar(a, 16)))
            nm = len(ml)
            for i, m in enumerate(ml):
                k(m)
                mi += 1
                out = rl[i * len(rl) // (nm - 2):(i + 1) * len(rl) // (nm - 2)] if i < nm - 2 else []
                if i == TM - 1 and ks + PD < NKS:
                    out += load_W(ks + PD)[0].split('\n')
                if i == nm - 1 and ks + PD < NKS:
                    out += load_W(ks + PD)[1:]
                while pos < len(flat) and done < tot * mi / (0.8 * nm_tot):
                    out.append(flat[pos]); done += cost(flat[pos]); pos += 1
                for line in out:
                    k(line)
                    if line.startswith('ds_write'):
                        nds_after = 0
                    elif line.startswith('ds_'):
                        nds_after += 1
            fs ^= 1
        assert pos == len(flat)
        if cw < NC:
            k('s_waitcnt lgkmcnt(%d)' % min(nds_after, 15))
            k('s_barrier')

    stamp()
    v2 = RA(vAd, vAd + 4 * APT * NC)
    vM = v2.alloc(); vN = v2.alloc()
    k('s_mul_i32 %s, %s, %d' % (sr(sT2), sr(sTm), BM))
    k('s_mul_i32 %s, %s, %d' % (sr(sT3), sr(sTn), BN))
    k('v_and_b32 %s, 31, %s' % (vr(t3), vr(vLane)))
    k('v_lshrrev_b32 %s, 5, %s' % (vr(t4), vr(vLane)))
    k('v_lshlrev_b32 %s, 2, %s' % (vr(t4), vr(t4)))
    k('v_lshlrev_b32 %s, 5, %s' % (vr(t2), vr(vWave)))
    k('v_add_u32 %s, %s, %s' % (vr(vM), sr(sT2), vr(t3)))
    k('v_add3_u32 %s, %s, %s, %s' % (vr(vN), vr(t2), vr(t4), sr(sT3)))
    ctx = dict(alg=None, k=k, v=v2, s=s, BM=BM, BN=BN, vLane=vLane, vWave=vWave,
               sTm=sTm, sTn=sTn, sTmp=sTmp, srdO=srdO, srdR=srdR, t=(t1, t2, t3, t4), sT2=sT2, sT3=sT3,
               N=N, name=name, vM=vM, vN=vN, agpr=True, acc=acc, TM=TM, TN=TN)
    epi(ctx, **(epi_args or {}))
    if stamp_wg is not None:
        stamp()
        k('s_waitcnt lgkmcnt(0) vmcnt(0)')
        stamp()
        k('s_cmp_eq_u32 s2, %d' % stamp_wg)
        k('s_cbranch_scc0 L_end_%s' % name)
        make_srd(k, srdO, sTmp, ('dbg', 0), 256)
        k('v_cmp_eq_u32 vcc, 0, v0')
        k('s_and_saveexec_b64 %s, vcc' % sr(sTmp, 2))
        k('s_cbranch_execz L_end_%s' % name)
        for i, r in enumerate(stamps[1:]):
            k('s_sub_u32 %s, %s, %s' % (sr(sT2), sr(r), sr(stamps[0])))
            k('v_mov_b32 %s, %s' % (vr(t1), sr(sT2)))
            k('v_mov_b32 %s, %d' % (vr(t2), 4 * i))
            k('buffer_store_dword %s, %s, %s, 0 offen' % (vr(t1), vr(t2), sr(srdO, 4)))
    k.label('L_end_%s' % name)
    k('s_endpgm')
    k.lds = lds_total
    k.nwg = nwg
    return k


WS_WT = 0x1500000
WT_STRIDE = 0x190000


def transpose_side(k, base, name, stamp=False):
    PW = 320
    NKS = 28
    if stamp:
        k('s_memtime s[40:41]')
    k('s_sub_u32 s3, s2, %d' % base)
    k('s_cmp_ge_u32 s3, 28')
    k('s_cbranch_scc1 L_send_%s' % name)
    k('s_load_dwordx2 s[4:5], s[0:1], 32')
    k('s_load_dwordx2 s[6:7], s[0:1], 40')
    k('s_load_dwordx2 s[24:25], s[0:1], 72')
    k('s_waitcnt lgkmcnt(0)')
    k('s_mov_b32 s10, s3')
    k('s_mov_b32 s12, 0x%x' % WS_WT)
    k('s_cmp_lt_u32 s3, 14')
    k('s_cbranch_scc1 L_sel_%s' % name)
    k('s_mov_b32 s4, s6'); k('s_mov_b32 s5, s7')
    k('s_sub_u32 s10, s3, 14')
    k('s_mov_b32 s12, 0x%x' % (WS_WT + WT_STRIDE))
    k.label('L_sel_%s' % name)
    k('s_mov_b32 s16, s4'); k('s_and_b32 s17, s5, 0xffff')
    k('s_mov_b32 s18, %d' % (448 * 3584)); k('s_mov_b32 s19, 0x00020000')
    k('s_add_u32 s20, s24, s12')
    k('s_addc_u32 s21, s25, 0')
    k('s_and_b32 s21, s21, 0xffff')
    k('s_mov_b32 s22, %d' % (448 * 3584))
    k('s_mov_b32 s23, 0x00020000')
    k('v_lshrrev_b32 v1, 4, v0')
    k('v_and_b32 v2, 15, v0')
    k('v_lshlrev_b32 v2, 4, v2')
    k('s_lshl_b32 s13, s10, 8')
    k('v_mul_u32_u24 v3, 3584, v1')
    k('v_add3_u32 v3, v3, v2, s13')
    k('v_mul_u32_u24 v4, %d, v1' % PW)
    k('v_add_u32 v4, v4, v2')
    for i in range(28):
        k('s_mov_b32 s14, %d' % (i * 16 * 3584))
        k('buffer_load_dwordx4 v[%d:%d], v3, s[16:19], s14 offen' % (16 + 4 * i, 19 + 4 * i))
    k('v_and_b32 v5, 63, v0')
    k('v_lshrrev_b32 v6, 6, v0')
    k('v_lshrrev_b32 v7, 5, v5')
    k('v_lshlrev_b32 v7, 3, v7')
    k('v_bfe_u32 v8, v5, 2, 2')
    k('v_add_u32 v7, v7, v8')
    k('v_mul_u32_u24 v9, %d, v7' % PW)
    k('v_bfe_u32 v8, v5, 4, 1')
    k('v_lshlrev_b32 v8, 5, v8')
    k('v_and_b32 v10, 3, v5')
    k('v_lshlrev_b32 v10, 3, v10')
    k('v_add3_u32 v9, v9, v8, v10')
    k('v_lshl_add_u32 v9, v6, 6, v9')
    k('s_lshl_b32 s13, s10, 2')
    k('v_add_u32 v11, s13, v6')
    k('v_mul_u32_u24 v11, %d, v11' % (NKS * 1024))
    k('v_lshl_add_u32 v11, v5, 4, v11')
    for c in range(7):
        if stamp:
            k('s_memtime s[%d:%d]' % (42 + 2 * c, 43 + 2 * c))
            k('s_waitcnt lgkmcnt(0)')
        for j in range(4):
            k('ds_write_b128 v4, v[%d:%d] offset:%d' % (16 + 4 * (c * 4 + j), 19 + 4 * (c * 4 + j), j * 16 * PW))
        k('s_waitcnt lgkmcnt(0)')
        k('s_barrier')
        for ks in range(4):
            r = 132 + 4 * ks
            k('ds_read_b64_tr_b16 v[%d:%d], v9 offset:%d' % (r, r + 1, ks * 16 * PW))
            k('ds_read_b64_tr_b16 v[%d:%d], v9 offset:%d' % (r + 2, r + 3, ks * 16 * PW + 4 * PW))
        k('s_mov_b32 s14, %d' % (c * 4096))
        for ks in range(4):
            r = 132 + 4 * ks
            k('buffer_store_dwordx4 v[%d:%d], v11, s[20:23], s14 offen offset:%d' % (r, r + 3, ks * 1024))
        k('s_waitcnt lgkmcnt(0)')
        k('s_barrier')
    if stamp:
        k('s_waitcnt vmcnt(0)')
        k('s_memtime s[56:57]')
        k('s_waitcnt lgkmcnt(0)')
        k('s_cmp_eq_u32 s3, 5')
        k('s_cbranch_scc0 L_send_%s' % name)
        k('s_load_dwordx2 s[4:5], s[0:1], 64')
        k('s_waitcnt lgkmcnt(0)')
        k('s_mov_b32 s16, s4'); k('s_and_b32 s17, s5, 0xffff')
        k('s_mov_b32 s18, 256'); k('s_mov_b32 s19, 0x00020000')
        k('v_cmp_eq_u32 vcc, 0, v0')
        k('s_and_saveexec_b64 s[8:9], vcc')
        k('s_cbranch_execz L_send_%s' % name)
        for i in range(8):
            k('s_sub_u32 s10, s%d, s40' % (42 + 2 * i))
            k('v_mov_b32 v1, s10')
            k('v_mov_b32 v2, %d' % (64 + 4 * i))
            k('buffer_store_dword v1, v2, s[16:19], 0 offen')
    k.label('L_send_%s' % name)
    k('s_endpgm')
    return 28
```

```python
import sys
sys.path.insert(0, 'work')
from asmlib import build_file
from gemm import epi_resid, epi_qkv, epi_swiglu
import gemm2, gemm3, epi3, gemm4
from gemm4 import transpose_side, touch_side, WS_WT, WT_STRIDE
from epi3 import epi_swiglu3, epi_resid3, colsum_side, epi_qkv3
WS_CS = 0x1400000
from attn5 import attn_kernel

WS_QKV = 0
WS_AO = 0x600000
WS_X1 = 0x800000
WS_X2 = 0xA00000
WS_H = 0xC00000

def build(out_path, nk=10):
    ks = []
    for L in range(2):
        xin = ('A_x', 0) if L == 0 else ('ws', WS_X2)
        xout2 = ('ws', WS_X2) if L == 0 else ('out', 0)
        ks.append(gemm3.gemm_kernel('g1_%d_kernel' % L, 448, 1344, 64, 192, xin, [('A_wqkv', 0)], epi_qkv3,
                                    mode='tile', WM=2, WN=2, BK=64, NS=3, D=2, ln=True, GM=8, GN=1,
                                    side=(transpose_side if L == 0 else None), pf=(L == 0),
                                    epi_args=dict(qkv=('ws', WS_QKV))))
        ks.append(attn_kernel('attn_%d_kernel' % L, ('ws', WS_QKV), ('ws', WS_AO)))
        ks.append(gemm3.gemm_kernel('g3_%d_kernel' % L, 448, 448, 64, 64, ('ws', WS_AO), [('A_wo', 0)], epi_resid3,
                                    mode='splitk', BK=64, NS=3, D=4, GM=8, GN=1,
                                    epi_args=dict(res=xin, out=('ws', WS_X1))))
        ks.append(gemm4.gemm_dw('g4_%d_kernel' % L, 448, 1792, 128, 128, ('ws', WS_X1),
                                [('ws', WS_WT), ('ws', WS_WT + WT_STRIDE)], epi_swiglu3, BK=64, NS=3, PD=6,
                                side=(touch_side('B_w2', 1792 * 448 * 2) if L == 0 else None),
                                epi_args=dict(out=('ws', WS_H))))
        ks.append(gemm3.gemm_kernel('g5_%d_kernel' % L, 1792, 448, 64, 64, ('ws', WS_H), [('B_w2', 0)], epi_resid3,
                                    mode='splitk', BK=64, NS=3, D=4, GM=8, GN=1,
                                    epi_args=dict(res=('ws', WS_X1), out=xout2)))
    ks = ks[:nk]
    for k in ks:
        k.finalize()
        print(k.name, 'vgpr', k.vgpr_hi, 'agpr', k.agpr_hi, 'sgpr', k.sgpr_hi, 'lds', k.lds, 'nwg', k.nwg, 'ninst', len(k.items))
    launches = [(k.name, (k.nwg, 1, 1), (256, 1, 1), k.lds) for k in ks]
    open(out_path, 'w').write(build_file(ks, launches))

if __name__ == '__main__':
    build(sys.argv[1] if len(sys.argv) > 1 else 'full.s', int(sys.argv[2]) if len(sys.argv) > 2 else 10)
```

```python
from asmlib import Kernel
from gemm import RA, vr, sr, f32bits
from epi3 import make_srd, preload_kernargs
import math

S_LEN = 2048
NH = 16
DH = 28


def attn_kernel(name, qkv, ao):
    k = Kernel(name)
    KT = 128
    NKB = KT // 32
    NIT = (S_LEN // 2) // KT
    PK = 80
    PV = 64
    szK = KT * PK
    szV = KT * PV
    offV = 4 * szK
    lds_total = offV + 4 * szV
    nwg = NH * (S_LEN // 64)
    CSC = (DH ** -0.5) * math.log2(math.e)

    s = RA(4, 100)
    v = RA(1, 256)
    sTmp = s.alloc(2, 2)
    srdQ = s.alloc(4, 4)
    srdO = s.alloc(4, 4)
    sHead = s.alloc(); sQb = s.alloc(); sT = s.alloc(); sKoff = s.alloc(); sVoff = s.alloc()
    sCnt = s.alloc(); sC = s.alloc(2, 2)

    preload_kernargs(k, s)
    k('s_cmp_ge_u32 s2, %d' % nwg)
    k('s_cbranch_scc1 L_end_%s' % name)
    k('s_and_b32 %s, s2, 7' % sr(sHead))
    k('s_lshl_b32 %s, %s, 1' % (sr(sHead), sr(sHead)))
    k('s_bfe_u32 %s, s2, 0x10003' % sr(sT))
    k('s_add_u32 %s, %s, %s' % (sr(sHead), sr(sHead), sr(sT)))
    k('s_lshr_b32 %s, s2, 4' % sr(sQb))
    k('s_mov_b32 %s, 0x%08x' % (sr(sC), f32bits(CSC)))
    k('s_mov_b32 %s, 0x%08x' % (sr(sC + 1), f32bits(CSC)))

    vLane = v.alloc(); vWave = v.alloc(); vHH = v.alloc(); vKh = v.alloc()
    t1 = v.alloc(); t2 = v.alloc(); t3 = v.alloc(); t4 = v.alloc()
    k('v_and_b32 %s, 63, v0' % vr(vLane))
    k('v_lshrrev_b32 %s, 6, v0' % vr(vWave))
    k('v_lshrrev_b32 %s, 5, %s' % (vr(vHH), vr(vLane)))
    k('v_lshrrev_b32 %s, 1, %s' % (vr(vKh), vr(vWave)))

    vQ = v.alloc(8, 4)
    vQoff = v.alloc()
    k('v_and_b32 %s, 31, %s' % (vr(t1), vr(vLane)))
    k('v_and_b32 %s, 1, %s' % (vr(t2), vr(vWave)))
    k('v_lshl_add_u32 %s, %s, 5, %s' % (vr(t1), vr(t2), vr(t1)))
    k('s_lshl_b32 %s, %s, 6' % (sr(sT), sr(sQb)))
    k('v_add_u32 %s, %s, %s' % (vr(t1), sr(sT), vr(t1)))
    vQrow = v.alloc()
    k('v_mov_b32 %s, %s' % (vr(vQrow), vr(t1)))
    k('s_lshl_b32 %s, %s, 11' % (sr(sT), sr(sHead)))
    k('v_add_u32 %s, %s, %s' % (vr(t1), sr(sT), vr(t1)))
    k('v_lshlrev_b32 %s, 6, %s' % (vr(vQoff), vr(t1)))
    k('v_lshl_add_u32 %s, %s, 4, %s' % (vr(vQoff), vr(vHH), vr(vQoff)))

    vKg = v.alloc(); vKst = v.alloc(); vVst = v.alloc(); vMask = v.alloc(); vOne = v.alloc()
    k('v_bfe_u32 %s, v0, 2, 5' % vr(t1))
    k('v_and_b32 %s, 3, v0' % vr(t2))
    k('v_lshrrev_b32 %s, 7, v0' % vr(t3))
    k('v_lshl_add_u32 %s, %s, 10, %s' % (vr(t4), vr(t3), vr(t1)))
    k('v_lshlrev_b32 %s, 6, %s' % (vr(vKg), vr(t4)))
    k('v_lshl_add_u32 %s, %s, 4, %s' % (vr(vKg), vr(t2), vr(vKg)))
    k('v_mul_u32_u24 %s, %d, %s' % (vr(vKst), PK, vr(t1)))
    k('v_lshl_add_u32 %s, %s, 4, %s' % (vr(vKst), vr(t2), vr(vKst)))
    k('v_mul_u32_u24 %s, %d, %s' % (vr(t4), 2 * szK, vr(t3)))
    k('v_add_u32 %s, %s, %s' % (vr(vKst), vr(vKst), vr(t4)))
    k('v_mul_u32_u24 %s, %d, %s' % (vr(vVst), PV, vr(t1)))
    k('v_lshl_add_u32 %s, %s, 4, %s' % (vr(vVst), vr(t2), vr(vVst)))
    k('v_mul_u32_u24 %s, %d, %s' % (vr(t4), 2 * szV, vr(t3)))
    k('v_add3_u32 %s, %s, %s, %d' % (vr(vVst), vr(vVst), vr(t4), 0) if False else
      'v_add_u32 %s, %s, %s' % (vr(vVst), vr(vVst), vr(t4)))
    k('v_add_u32 %s, %d, %s' % (vr(vVst), offV, vr(vVst)))
    k('v_cmp_eq_u32 vcc, 3, %s' % vr(t2))
    k('v_cndmask_b32 %s, -1, 0, vcc' % vr(vMask))
    k('v_mov_b32 %s, 0x3f80' % vr(t3))
    k('v_cndmask_b32 %s, 0, %s, vcc' % (vr(vOne), vr(t3)))
    k('s_lshl_b32 %s, %s, 17' % (sr(sKoff), sr(sHead)))
    k('s_add_u32 %s, %s, 0x400000' % (sr(sVoff), sr(sKoff)))
    k('s_add_u32 %s, %s, 0x200000' % (sr(sKoff), sr(sKoff)))
    vKd = v.alloc(4 * NKB, 4); vVd = v.alloc(4 * NKB, 4)

    def load_tile():
        for h in range(NKB):
            k('buffer_load_dwordx4 %s, %s, %s, %s offen offset:%d' % (vr(vKd + 4 * h, 4), vr(vKg), sr(srdQ, 4), sr(sKoff), (h & 1) * 2048))
            k('buffer_load_dwordx4 %s, %s, %s, %s offen offset:%d' % (vr(vVd + 4 * h, 4), vr(vKg), sr(srdQ, 4), sr(sVoff), (h & 1) * 2048))
            if h == 1:
                k('s_add_u32 %s, %s, 4096' % (sr(sKoff), sr(sKoff)))
                k('s_add_u32 %s, %s, 4096' % (sr(sVoff), sr(sVoff)))
        k('s_add_u32 %s, %s, %d' % (sr(sKoff), sr(sKoff), 4096))
        k('s_add_u32 %s, %s, %d' % (sr(sVoff), sr(sVoff), 4096))

    def store_tile(p, only=None):
        for h in range(NKB):
            if only is not None and h != only:
                continue
            k('v_and_b32 %s, %s, %s' % (vr(vKd + 4 * h + 2), vr(vMask), vr(vKd + 4 * h + 2)))
            k('v_and_b32 %s, %s, %s' % (vr(vKd + 4 * h + 3), vr(vMask), vr(vKd + 4 * h + 3)))
            k('v_and_or_b32 %s, %s, %s, %s' % (vr(vVd + 4 * h + 2), vr(vVd + 4 * h + 2), vr(vMask), vr(vOne)))
            k('v_and_b32 %s, %s, %s' % (vr(vVd + 4 * h + 3), vr(vMask), vr(vVd + 4 * h + 3)))
            k('ds_write_b128 %s, %s offset:%d' % (vr(vKst), vr(vKd + 4 * h, 4), p * szK + h * 32 * PK))
            k('ds_write_b128 %s, %s offset:%d' % (vr(vVst), vr(vVd + 4 * h, 4), p * szV + h * 32 * PV))

    vKa = v.alloc(); vVa = v.alloc()
    k('v_and_b32 %s, 31, %s' % (vr(t1), vr(vLane)))
    k('v_mul_u32_u24 %s, %d, %s' % (vr(vKa), PK, vr(t1)))
    k('v_lshl_add_u32 %s, %s, 4, %s' % (vr(vKa), vr(vHH), vr(vKa)))
    k('v_mul_u32_u24 %s, %d, %s' % (vr(t2), 2 * szK, vr(vKh)))
    k('v_add_u32 %s, %s, %s' % (vr(vKa), vr(vKa), vr(t2)))
    k('v_bfe_u32 %s, %s, 2, 2' % (vr(t1), vr(vLane)))
    k('v_lshl_add_u32 %s, %s, 2, %s' % (vr(t1), vr(vHH), vr(t1)))
    k('v_mul_u32_u24 %s, %d, %s' % (vr(vVa), PV, vr(t1)))
    k('v_bfe_u32 %s, %s, 4, 1' % (vr(t2), vr(vLane)))
    k('v_lshl_add_u32 %s, %s, 5, %s' % (vr(vVa), vr(t2), vr(vVa)))
    k('v_and_b32 %s, 3, %s' % (vr(t2), vr(vLane)))
    k('v_lshl_add_u32 %s, %s, 3, %s' % (vr(vVa), vr(t2), vr(vVa)))
    k('v_mul_u32_u24 %s, %d, %s' % (vr(t2), 2 * szV, vr(vKh)))
    k('v_add_u32 %s, %s, %s' % (vr(vVa), vr(vVa), vr(t2)))
    k('v_add_u32 %s, %d, %s' % (vr(vVa), offV, vr(vVa)))

    vS = v.alloc(16 * NKB, 4)
    vP = v.alloc(8 * NKB, 4)
    vO = v.alloc(16, 4)
    vKf = v.alloc(8 * NKB, 4)
    vVf = v.alloc(8 * NKB, 4)
    vM = v.alloc(); vMx = v.alloc(); vMx2 = v.alloc(); vAl = v.alloc(2, 2); vMc = v.alloc(2, 2)
    for r in range(16):
        k('v_mov_b32 %s, 0' % vr(vO + r))
    k('v_mov_b32 %s, 0xff800000' % vr(vM))

    k('s_waitcnt lgkmcnt(0)')
    make_srd(k, srdQ, sTmp, qkv, 3 * 16 * 2048 * 64)
    make_srd(k, srdO, sTmp, ao, 2048 * 448 * 2)
    load_tile()
    k('buffer_load_dwordx4 %s, %s, %s, 0 offen' % (vr(vQ, 4), vr(vQoff), sr(srdQ, 4)))
    k('buffer_load_dwordx4 %s, %s, %s, 0 offen offset:32' % (vr(vQ + 4, 4), vr(vQoff), sr(srdQ, 4)))
    store_tile(0)
    k('v_cmp_eq_u32 vcc, 1, %s' % vr(vHH))
    k('v_cndmask_b32 %s, -1, 0, vcc' % vr(t1))
    k('v_and_b32 %s, %s, %s' % (vr(vQ + 6), vr(t1), vr(vQ + 6)))
    k('v_and_b32 %s, %s, %s' % (vr(vQ + 7), vr(t1), vr(vQ + 7)))
    k('s_waitcnt lgkmcnt(0)')
    k('s_barrier')
    k('s_mov_b32 %s, 0' % sr(sCnt))
    k.label('L_loop_%s' % name)
    for p in range(2):
        load_tile()
        for kb in range(NKB):
            for c in range(2):
                k('ds_read_b128 %s, %s offset:%d' %
                  (vr(vKf + 8 * kb + 4 * c, 4), vr(vKa), p * szK + kb * 32 * PK + c * 32))
        for kb in range(NKB):
            k('v_mfma_f32_32x32x16_bf16 %s, %s, %s, 0' % (vr(vS + 16 * kb, 16), vr(vKf + 8 * kb, 4), vr(vQ, 4)))
            k('v_mfma_f32_32x32x16_bf16 %s, %s, %s, %s' %
              (vr(vS + 16 * kb, 16), vr(vKf + 8 * kb + 4, 4), vr(vQ + 4, 4), vr(vS + 16 * kb, 16)))
        for kg in range(2 * NKB):
            base = p * szV + kg * 16 * PV
            k('ds_read_b64_tr_b16 %s, %s offset:%d' % (vr(vVf + 4 * kg, 2), vr(vVa), base))
            k('ds_read_b64_tr_b16 %s, %s offset:%d' % (vr(vVf + 4 * kg + 2, 2), vr(vVa), base + 8 * PV))
        H = 8 * NKB
        ch = [vMx, vMx2]
        for c in range(2):
            k('v_max3_f32 %s, %s, %s, %s' % (vr(ch[c]), vr(vS + c * H), vr(vS + c * H + 1), vr(vS + c * H + 2)))
        for j in range(3, H - 1, 2):
            for c in range(2):
                k('v_max3_f32 %s, %s, %s, %s' % (vr(ch[c]), vr(ch[c]), vr(vS + c * H + j), vr(vS + c * H + j + 1)))
        k('v_max3_f32 %s, %s, %s, %s' % (vr(vMx), vr(vMx), vr(vS + H - 1), vr(vS + 2 * H - 1)))
        k('v_max_f32 %s, %s, %s' % (vr(vMx), vr(vMx), vr(vMx2)))
        k('v_mov_b32 %s, %s' % (vr(t1), vr(vMx)))
        k('v_permlane32_swap_b32 %s, %s' % (vr(vMx), vr(t1)))
        k('v_max3_f32 %s, %s, %s, %s' % (vr(vMx), vr(vMx), vr(t1), vr(vM)))
        k('v_sub_f32 %s, %s, %s' % (vr(vAl), vr(vM), vr(vMx)))
        k('v_mul_f32 %s, %s, %s' % (vr(vAl), sr(sC), vr(vAl)))
        k('v_exp_f32 %s, %s' % (vr(vAl), vr(vAl)))
        k('v_mov_b32 %s, %s' % (vr(vM), vr(vMx)))
        k('v_mul_f32 %s, %s, %s' % (vr(vMc), sr(sC), vr(vMx)))
        k('v_sub_f32 %s, 0, %s' % (vr(vMc), vr(vMc)))
        k('v_mov_b32 %s, %s' % (vr(vMc + 1), vr(vMc)))
        k('v_mov_b32 %s, %s' % (vr(vAl + 1), vr(vAl)))
        for j in range(8 * NKB):
            k('v_pk_fma_f32 %s, %s, %s, %s' % (vr(vS + 2 * j, 2), vr(vS + 2 * j, 2), sr(sC, 2), vr(vMc, 2)))
        for j in range(16 * NKB):
            k('v_exp_f32 %s, %s' % (vr(vS + j), vr(vS + j)))
        for j in range(8 * NKB):
            k('v_cvt_pk_bf16_f32 %s, %s, %s' % (vr(vP + j), vr(vS + 2 * j), vr(vS + 2 * j + 1)))
        for r in range(8):
            k('v_pk_mul_f32 %s, %s, %s' % (vr(vO + 2 * r, 2), vr(vO + 2 * r, 2), vr(vAl, 2)))
        for kg in range(2 * NKB):
            k('v_mfma_f32_32x32x16_bf16 %s, %s, %s, %s' %
              (vr(vO, 16), vr(vVf + 4 * kg, 4), vr(vP + 4 * kg, 4), vr(vO, 16)))
            if kg % 2 == 0:
                store_tile(p ^ 1, kg // 2)
        k('s_waitcnt lgkmcnt(0)')
        k('s_barrier')
    k('s_add_u32 %s, %s, 1' % (sr(sCnt), sr(sCnt)))
    k('s_cmp_lt_u32 %s, %d' % (sr(sCnt), NIT // 2))
    k('s_cbranch_scc1 L_loop_%s' % name)

    vCa = v.alloc()
    k('v_and_b32 %s, 1, %s' % (vr(t1), vr(vWave)))
    k('v_mul_u32_u24 %s, %d, %s' % (vr(t1), 17 * 256, vr(t1)))
    k('v_lshl_add_u32 %s, %s, 2, %s' % (vr(vCa), vr(vLane), vr(t1)))
    k('v_cmp_eq_u32 vcc, 1, %s' % vr(vKh))
    k('s_and_saveexec_b64 %s, vcc' % sr(sTmp, 2))
    k('s_cbranch_execz L_skipw_%s' % name)
    for r in range(16):
        k('ds_write_b32 %s, %s offset:%d' % (vr(vCa), vr(vO + r), r * 256))
    k('ds_write_b32 %s, %s offset:%d' % (vr(vCa), vr(vM), 16 * 256))
    k.label('L_skipw_%s' % name)
    k('s_mov_b64 exec, %s' % sr(sTmp, 2))
    k('s_waitcnt lgkmcnt(0)')
    k('s_barrier')
    k('v_cmp_eq_u32 vcc, 0, %s' % vr(vKh))
    k('s_and_saveexec_b64 %s, vcc' % sr(sTmp, 2))
    k('s_cbranch_execz L_end_%s' % name)
    for r in range(16):
        k('ds_read_b32 %s, %s offset:%d' % (vr(vS + r), vr(vCa), r * 256))
    k('ds_read_b32 %s, %s offset:%d' % (vr(t3), vr(vCa), 16 * 256))
    k('v_max_f32 %s, %s, %s' % (vr(vMx), vr(vM), vr(t3)))
    k('v_sub_f32 %s, %s, %s' % (vr(t1), vr(vM), vr(vMx)))
    k('v_sub_f32 %s, %s, %s' % (vr(t2), vr(t3), vr(vMx)))
    k('v_mul_f32 %s, %s, %s' % (vr(t1), sr(sC), vr(t1)))
    k('v_mul_f32 %s, %s, %s' % (vr(t2), sr(sC), vr(t2)))
    k('v_exp_f32 %s, %s' % (vr(t1), vr(t1)))
    k('v_exp_f32 %s, %s' % (vr(t2), vr(t2)))
    for r in range(16):
        k('v_mul_f32 %s, %s, %s' % (vr(vO + r), vr(t1), vr(vO + r)))
        k('v_fmac_f32 %s, %s, %s' % (vr(vO + r), vr(t2), vr(vS + r)))
    k('v_mov_b32 %s, %s' % (vr(t1), vr(vO + 12)))
    k('v_mov_b32 %s, %s' % (vr(t2), vr(vO + 12)))
    k('v_permlane32_swap_b32 %s, %s' % (vr(t1), vr(t2)))
    k('v_rcp_f32 %s, %s' % (vr(t2), vr(t2)))
    vOoff = v.alloc()
    k('v_mul_u32_u24 %s, 896, %s' % (vr(vOoff), vr(vQrow)))
    k('s_mul_i32 %s, %s, 56' % (sr(sT), sr(sHead)))
    k('v_add_u32 %s, %s, %s' % (vr(vOoff), sr(sT), vr(vOoff)))
    k('v_lshl_add_u32 %s, %s, 3, %s' % (vr(vOoff), vr(vHH), vr(vOoff)))
    for r in range(16):
        k('v_mul_f32 %s, %s, %s' % (vr(vO + r), vr(t2), vr(vO + r)))
    for g in range(4):
        k('v_cvt_pk_bf16_f32 %s, %s, %s' % (vr(vP + 2 * g), vr(vO + 4 * g), vr(vO + 4 * g + 1)))
        k('v_cvt_pk_bf16_f32 %s, %s, %s' % (vr(vP + 2 * g + 1), vr(vO + 4 * g + 2), vr(vO + 4 * g + 3)))
    for g in range(3):
        k('buffer_store_dwordx2 %s, %s, %s, 0 offen offset:%d' % (vr(vP + 2 * g, 2), vr(vOoff), sr(srdO, 4), g * 16))
    k('s_and_b64 exec, exec, 0xffffffff' if False else 's_mov_b32 exec_hi, 0')
    k('buffer_store_dwordx2 %s, %s, %s, 0 offen offset:48' % (vr(vP + 6, 2), vr(vOoff), sr(srdO, 4)))
    k.label('L_end_%s' % name)
    k('s_endpgm')
    k.lds = max(lds_total, 2 * 17 * 256)
    k.nwg = nwg
    return k
```

```python
from asmlib import Kernel
from gemm import RA, vr, sr, f32bits, SLOT, M_ROWS
import epi3
from epi3 import make_srd, preload_kernargs


def ar(b, n=1):
    return 'a%d' % b if n == 1 else 'a[%d:%d]' % (b, b + n - 1)


def gemm_kernel(name, K, N, BM, BN, A, Ws, epi, mode='tile', WM=2, WN=2, BK=64, NS=3, D=3, ln=False,
                GM=8, GN=1, epi_args=None, agpr=False, stamp_wg=None, abl='', alg=None, side=None):
    k = Kernel(name)
    NC = K // BK
    NW = len(Ws)
    NTM = M_ROWS // BM
    NTN = N // BN
    nwg = NTM * NTN
    lda = K * 2
    ldw = N * 2
    PA = BK * 2 + 16
    PW = BN * 2 + (64 if (BN * 2) % 128 == 0 else 0)
    assert PW % 256 in (64, 192), PW
    szA = BM * PA
    szW = BK * PW
    szS = szA + NW * szW
    lds_total = NS * szS
    if mode == 'tile':
        assert WM * WN == 4
        TM = BM // WM // 32
        TN = BN // WN // 32
        NST = BK // 16
        KMUL = 1
    else:
        TM = BM // 32
        TN = BN // 32
        assert TM * TN == 4
        NST = BK // 64
        KMUL = 4
        lds_total = max(lds_total, 4 * 4 * 4096)
    offSt = lds_total
    if alg:
        lds_total += BM * 8
    LPR = BK * 2 // 16
    XROWS = 256 // LPR
    APT = BM // XROWS
    PPR = BN * 2 // 16
    WPT = BK * PPR // 256
    assert BK * PPR % 256 == 0
    uniform_w = (256 % PPR == 0)
    D = min(D, NC)
    assert D >= NS - 1

    s = RA(4, 100)
    v = RA(1, 256)
    sTmp = s.alloc(2, 2)
    srdA = s.alloc(4, 4)
    srdW = [s.alloc(4, 4) for _ in range(NW)]
    srdO = s.alloc(4, 4)
    srdR = s.alloc(4, 4)
    sTm = s.alloc(); sTn = s.alloc(); sWoff = s.alloc(); sT2 = s.alloc(); sT3 = s.alloc(); sT4 = s.alloc()
    sArow = [s.alloc() for _ in range(APT)]

    stamps = []
    def stamp():
        if stamp_wg is None:
            return
        r = s.alloc(2, 2)
        stamps.append(r)
        k('s_memtime %s' % sr(r, 2))
        k('s_waitcnt lgkmcnt(0)')
    stamp()
    preload_kernargs(k, s)
    k('s_cmp_ge_u32 s2, %d' % nwg)
    k('s_cbranch_scc1 L_%s_%s' % ('side' if side else 'end', name))
    assert GM * GN == 8 and NTM % GM == 0 and NTN % GN == 0
    PM = NTM // GM; PN = NTN // GN
    magic = (1 << 32) // PN + 1
    k('s_lshr_b32 %s, s2, 3' % sr(sT3))
    k('s_and_b32 %s, s2, 7' % sr(sT4))
    if PN == 1:
        k('s_mov_b32 %s, %s' % (sr(sTm), sr(sT3)))
        k('s_mov_b32 %s, 0' % sr(sTn))
    else:
        k('s_mul_hi_u32 %s, %s, 0x%x' % (sr(sTm), sr(sT3), magic))
        k('s_mul_i32 %s, %s, %d' % (sr(sT2), sr(sTm), PN))
        k('s_sub_u32 %s, %s, %s' % (sr(sTn), sr(sT3), sr(sT2)))
    k('s_and_b32 %s, %s, %d' % (sr(sT2), sr(sT4), GM - 1))
    k('s_mul_i32 %s, %s, %d' % (sr(sT2), sr(sT2), PM))
    k('s_add_u32 %s, %s, %s' % (sr(sTm), sr(sTm), sr(sT2)))
    k('s_lshr_b32 %s, %s, %d' % (sr(sT2), sr(sT4), GM.bit_length() - 1))
    k('s_mul_i32 %s, %s, %d' % (sr(sT2), sr(sT2), PN))
    k('s_add_u32 %s, %s, %s' % (sr(sTn), sr(sTn), sr(sT2)))

    for j in range(APT):
        k('s_mov_b32 %s, %d' % (sr(sArow[j]), j * XROWS * lda))

    vLane = v.alloc(); vWave = v.alloc()
    k('v_and_b32 %s, 63, v0' % vr(vLane))
    k('v_lshrrev_b32 %s, 6, v0' % vr(vWave))
    t1 = v.alloc(); t2 = v.alloc(); t3 = v.alloc(); t4 = v.alloc()
    vAg = v.alloc(); vAst = v.alloc()
    sh = LPR.bit_length() - 1
    k('v_lshrrev_b32 %s, %d, v0' % (vr(t1), sh))
    k('v_and_b32 %s, %d, v0' % (vr(t2), LPR - 1))
    k('v_lshlrev_b32 %s, 4, %s' % (vr(t2), vr(t2)))
    k('s_mul_i32 %s, %s, %d' % (sr(sT2), sr(sTm), BM * lda))
    k('v_mul_u32_u24 %s, %d, %s' % (vr(vAg), lda, vr(t1)))
    k('v_add3_u32 %s, %s, %s, %s' % (vr(vAg), vr(vAg), vr(t2), sr(sT2)))
    k('v_mul_u32_u24 %s, %d, %s' % (vr(vAst), PA, vr(t1)))
    k('v_add_u32 %s, %s, %s' % (vr(vAst), vr(vAst), vr(t2)))
    k('s_mul_i32 %s, %s, %d' % (sr(sT2), sr(sTn), BN * 2))
    if uniform_w:
        nadr = 1
        WROWS = 256 // PPR
    else:
        nadr = WPT
    vWg = [v.alloc() for _ in range(nadr)]
    vWst = [v.alloc() for _ in range(nadr)]
    for j in range(nadr):
        if uniform_w:
            k('v_lshrrev_b32 %s, %d, v0' % (vr(t1), PPR.bit_length() - 1))
            k('v_and_b32 %s, %d, v0' % (vr(t2), PPR - 1))
        else:
            k('v_add_u32 %s, %d, v0' % (vr(t3), 256 * j))
            mg = (1 << 20) // PPR + 1
            assert all(((p * mg) >> 20) == p // PPR for p in range(256 * WPT))
            k('v_mul_u32_u24 %s, 0x%x, %s' % (vr(t1), mg, vr(t3)))
            k('v_lshrrev_b32 %s, 20, %s' % (vr(t1), vr(t1)))
            k('v_mul_u32_u24 %s, %d, %s' % (vr(t2), PPR, vr(t1)))
            k('v_sub_u32 %s, %s, %s' % (vr(t2), vr(t3), vr(t2)))
        k('v_lshlrev_b32 %s, 4, %s' % (vr(t2), vr(t2)))
        k('v_mul_u32_u24 %s, %d, %s' % (vr(vWg[j]), ldw, vr(t1)))
        k('v_add3_u32 %s, %s, %s, %s' % (vr(vWg[j]), vr(vWg[j]), vr(t2), sr(sT2)))
        k('v_mul_u32_u24 %s, %d, %s' % (vr(vWst[j]), PW, vr(t1)))
        k('v_add_u32 %s, %s, %s' % (vr(vWst[j]), vr(vWst[j]), vr(t2)))
        k('v_add_u32 %s, %d, %s' % (vr(vWst[j]), szA, vr(vWst[j])))
    vXa = v.alloc(); vWa = v.alloc()
    if mode == 'tile':
        k('v_lshrrev_b32 %s, %d, %s' % (vr(t1), WN.bit_length() - 1, vr(vWave)))
        k('v_and_b32 %s, %d, %s' % (vr(t2), WN - 1, vr(vWave)))
        k('v_mul_u32_u24 %s, %d, %s' % (vr(t1), BM // WM, vr(t1)))
        k('v_and_b32 %s, 31, %s' % (vr(t3), vr(vLane)))
        k('v_add_u32 %s, %s, %s' % (vr(t3), vr(t3), vr(t1)))
    else:
        k('v_and_b32 %s, 31, %s' % (vr(t3), vr(vLane)))
    k('v_mul_u32_u24 %s, %d, %s' % (vr(vXa), PA, vr(t3)))
    k('v_lshrrev_b32 %s, 5, %s' % (vr(t4), vr(vLane)))
    k('v_lshlrev_b32 %s, 4, %s' % (vr(t4), vr(t4)))
    k('v_add_u32 %s, %s, %s' % (vr(vXa), vr(vXa), vr(t4)))
    if mode != 'tile':
        k('v_lshl_add_u32 %s, %s, 5, %s' % (vr(vXa), vr(vWave), vr(vXa)))
    k('v_lshrrev_b32 %s, 5, %s' % (vr(t1), vr(vLane)))
    k('v_lshlrev_b32 %s, 3, %s' % (vr(t1), vr(t1)))
    k('v_bfe_u32 %s, %s, 2, 2' % (vr(t3), vr(vLane)))
    k('v_add_u32 %s, %s, %s' % (vr(t1), vr(t1), vr(t3)))
    if mode != 'tile':
        k('v_lshl_add_u32 %s, %s, 4, %s' % (vr(t1), vr(vWave), vr(t1)))
    k('v_mul_u32_u24 %s, %d, %s' % (vr(vWa), PW, vr(t1)))
    k('v_bfe_u32 %s, %s, 4, 1' % (vr(t3), vr(vLane)))
    k('v_lshlrev_b32 %s, 5, %s' % (vr(t3), vr(t3)))
    k('v_and_b32 %s, 3, %s' % (vr(t4), vr(vLane)))
    k('v_lshlrev_b32 %s, 3, %s' % (vr(t4), vr(t4)))
    k('v_add3_u32 %s, %s, %s, %s' % (vr(vWa), vr(vWa), vr(t3), vr(t4)))
    if mode == 'tile':
        k('v_mul_u32_u24 %s, %d, %s' % (vr(t2), BN // WN * 2, vr(t2)))
        k('v_add_u32 %s, %s, %s' % (vr(vWa), vr(vWa), vr(t2)))
    k('v_add_u32 %s, %d, %s' % (vr(vWa), szA, vr(vWa)))
    def staged(base):
        regs = [base]
        for st in range(1, NS):
            r = v.alloc()
            k('v_add_u32 %s, %d, %s' % (vr(r), st * szS, vr(base)))
            regs.append(r)
        return regs
    vXaS = staged(vXa); vWaS = staged(vWa); vAstS = staged(vAst)
    vWstS = [staged(r) for r in vWst]

    if ln:
        vAd = v.alloc(4 * APT * NC, 4)
    else:
        vAd = v.alloc(4 * APT * D, 4)
    vWd = [v.alloc(4 * WPT * D, 4) for _ in range(NW)]
    vXf = [v.alloc(4 * TM, 4) for _ in range(2)]
    vWf = [[v.alloc(4 * TN, 4) for _ in range(NW)] for _ in range(2)]
    if agpr:
        an = [0]
        def aalloc():
            r = an[0]; an[0] += 16; return r
        acc = [[[aalloc() for _ in range(TM)] for _ in range(TN)] for _ in range(NW)]
        accr = ar
    else:
        acc = [[[v.alloc(16, 4) for _ in range(TM)] for _ in range(TN)] for _ in range(NW)]
        accr = vr

    if alg:
        aS = v.alloc(APT); aQ = v.alloc(APT); aOnes = v.alloc()
        k('v_mov_b32 %s, 0x3f803f80' % vr(aOnes))
        for j in range(APT):
            k('v_mov_b32 %s, 0' % vr(aS + j)); k('v_mov_b32 %s, 0' % vr(aQ + j))
        vCs = [[[v.alloc(4, 4) for _ in range(4)] for _ in range(TN)] for _ in range(NW)]

    def load_A(c):
        out = []
        if ln:
            return out
        for j in range(APT):
            out.append('buffer_load_dwordx4 %s, %s, %s, %s offen offset:%d' %
                       (vr(vAd + 4 * ((c % D) * APT + j), 4), vr(vAg), sr(srdA, 4), sr(sArow[j]), c * BK * 2))
        return out

    def load_W(c):
        out = []
        for j in range(WPT):
            if uniform_w:
                pre = 's_mov_b32 %s, %d\n' % (sr(sWoff), (c * BK + j * WROWS) * ldw)
                adr = vWg[0]
            else:
                pre = 's_mov_b32 %s, %d\n' % (sr(sWoff), c * BK * ldw) if j == 0 else ''
                adr = vWg[j]
            for w in range(NW):
                out.append(pre + 'buffer_load_dwordx4 %s, %s, %s, %s offen' %
                           (vr(vWd[w] + 4 * ((c % D) * WPT + j), 4), vr(adr), sr(srdW[w], 4), sr(sWoff)))
                pre = ''
        return out

    ds_since_write = [0]

    def store_lds(c):
        out = []
        st = c % NS
        for j in range(APT):
            src = vAd + 4 * (((c % D) * APT + j) if not ln else (c * APT + j))
            pre = ''
            if ln:
                pre = normalize(c, j)
            if alg:
                for q in range(4):
                    pre += 'v_dot2_f32_bf16 %s, %s, %s, %s\n' % (vr(aS + j), vr(src + q), vr(aOnes), vr(aS + j))
                    pre += 'v_dot2_f32_bf16 %s, %s, %s, %s\n' % (vr(aQ + j), vr(src + q), vr(src + q), vr(aQ + j))
            out.append(pre + 'ds_write_b128 %s, %s offset:%d' % (vr(vAstS[st]), vr(src, 4), j * XROWS * PA))
        for w in range(NW):
            for j in range(WPT):
                if uniform_w:
                    out.append('ds_write_b128 %s, %s offset:%d' %
                               (vr(vWstS[0][st]), vr(vWd[w] + 4 * ((c % D) * WPT + j), 4), w * szW + j * WROWS * PW))
                else:
                    out.append('ds_write_b128 %s, %s offset:%d' %
                               (vr(vWstS[j][st]), vr(vWd[w] + 4 * ((c % D) * WPT + j), 4), w * szW))
        return out

    k('s_waitcnt lgkmcnt(0)')
    make_srd(k, srdA, sTmp, A, M_ROWS * lda)
    for i in range(NW):
        make_srd(k, srdW[i], sTmp, Ws[i], K * ldw)
    if ln:
        for c in range(NC):
            for j in range(APT):
                k('buffer_load_dwordx4 %s, %s, %s, %s offen offset:%d' %
                  (vr(vAd + 4 * (c * APT + j), 4), vr(vAg), sr(srdA, 4), sr(sArow[j]), c * BK * 2))
    else:
        for c in range(D):
            for x in load_A(c):
                k(x)
    for c in range(D):
        for x in load_W(c):
            k(x)

    if alg:
        assert mode == 'tile'
        srdC = s.alloc(4, 4)
        vCo = v.alloc()
        k('v_and_b32 %s, %d, %s' % (vr(t1), WN - 1, vr(vWave)))
        k('v_mul_u32_u24 %s, %d, %s' % (vr(t1), BN // WN, vr(t1)))
        k('v_lshrrev_b32 %s, 5, %s' % (vr(t2), vr(vLane)))
        k('v_lshlrev_b32 %s, 2, %s' % (vr(t2), vr(t2)))
        k('s_mul_i32 %s, %s, %d' % (sr(sT2), sr(sTn), BN))
        k('v_add3_u32 %s, %s, %s, %s' % (vr(vCo), vr(t1), vr(t2), sr(sT2)))
        k('v_lshlrev_b32 %s, 2, %s' % (vr(vCo), vr(vCo)))
        for w in range(NW):
            make_srd(k, srdC, sTmp, alg[w], N * 4)
            for nb in range(TN):
                for g in range(4):
                    k('buffer_load_dwordx4 %s, %s, %s, 0 offen offset:%d' %
                      (vr(vCs[w][nb][g], 4), vr(vCo), sr(srdC, 4), (nb * 32 + 8 * g) * 4))
    if ln:
        vS = v.alloc(APT); vQ = v.alloc(APT)
        vOnes = v.alloc()
        vR2 = v.alloc(2 * APT, 2); vC2 = v.alloc(2 * APT, 2)
        tp = v.alloc(2, 2)
        k('v_mov_b32 %s, 0x3f803f80' % vr(vOnes))
        for j in range(APT):
            k('v_mov_b32 %s, 0' % vr(vS + j)); k('v_mov_b32 %s, 0' % vr(vQ + j))
        for c in range(NC):
            for j in range(APT):
                for q in range(4):
                    x = vAd + 4 * (c * APT + j) + q
                    k('v_dot2_f32_bf16 %s, %s, %s, %s' % (vr(vS + j), vr(x), vr(vOnes), vr(vS + j)))
                    k('v_dot2_f32_bf16 %s, %s, %s, %s' % (vr(vQ + j), vr(x), vr(x), vr(vQ + j)))
        pms = ['quad_perm:[1,0,3,2]', 'quad_perm:[2,3,0,1]'] + (['row_half_mirror'] if LPR == 8 else [])
        assert LPR in (4, 8)
        for j in range(APT):
            for pm in pms:
                k('v_add_f32_dpp %s, %s, %s %s row_mask:0xf bank_mask:0xf' % (vr(t1), vr(vS + j), vr(vS + j), pm))
                k('v_add_f32_dpp %s, %s, %s %s row_mask:0xf bank_mask:0xf' % (vr(t2), vr(vQ + j), vr(vQ + j), pm))
                k('v_mov_b32 %s, %s' % (vr(vS + j), vr(t1)))
                k('v_mov_b32 %s, %s' % (vr(vQ + j), vr(t2)))
            S_ = vS + j; Q_ = vQ + j
            k('v_mul_f32 %s, 0x%08x, %s' % (vr(S_), f32bits(1.0 / K), vr(S_)))
            k('v_mul_f32 %s, 0x%08x, %s' % (vr(Q_), f32bits(1.0 / K), vr(Q_)))
            k('v_fma_f32 %s, -%s, %s, %s' % (vr(Q_), vr(S_), vr(S_), vr(Q_)))
            k('v_max_f32 %s, 0, %s' % (vr(Q_), vr(Q_)))
            k('v_cvt_pk_bf16_f32 %s, %s, %s' % (vr(t1), vr(S_), vr(Q_)))
            k('v_lshlrev_b32 %s, 16, %s' % (vr(S_), vr(t1)))
            k('v_and_b32 %s, 0xffff0000, %s' % (vr(Q_), vr(t1)))
            k('v_add_f32 %s, 0x%08x, %s' % (vr(Q_), f32bits(1e-5), vr(Q_)))
            k('v_cvt_pk_bf16_f32 %s, %s, %s' % (vr(t1), vr(Q_), vr(Q_)))
            k('v_lshlrev_b32 %s, 16, %s' % (vr(Q_), vr(t1)))
            k('v_sqrt_f32 %s, %s' % (vr(Q_), vr(Q_)))
            k('v_cvt_pk_bf16_f32 %s, %s, %s' % (vr(t1), vr(Q_), vr(Q_)))
            k('v_lshlrev_b32 %s, 16, %s' % (vr(Q_), vr(t1)))
            k('v_rcp_f32 %s, %s' % (vr(Q_), vr(Q_)))
            k('v_mov_b32 %s, %s' % (vr(vR2 + 2 * j), vr(Q_)))
            k('v_mov_b32 %s, %s' % (vr(vR2 + 2 * j + 1), vr(Q_)))
            k('v_mul_f32 %s, %s, %s' % (vr(vC2 + 2 * j), vr(S_), vr(Q_)))
            k('v_sub_f32 %s, 0, %s' % (vr(vC2 + 2 * j), vr(vC2 + 2 * j)))
            k('v_mov_b32 %s, %s' % (vr(vC2 + 2 * j + 1), vr(vC2 + 2 * j)))

        def normalize(c, j):
            txt = ''
            if 'nonorm' in abl:
                return txt
            for q in range(4):
                x = vAd + 4 * (c * APT + j) + q
                txt += 'v_lshlrev_b32 %s, 16, %s\n' % (vr(tp), vr(x))
                txt += 'v_and_b32 %s, 0xffff0000, %s\n' % (vr(tp + 1), vr(x))
                if 'pk' in abl:
                    txt += 'v_pk_fma_f32 %s, %s, %s, %s\n' % (vr(tp, 2), vr(tp, 2), vr(vR2 + 2 * j, 2), vr(vC2 + 2 * j, 2))
                else:
                    txt += 'v_fma_f32 %s, %s, %s, %s\n' % (vr(tp), vr(tp), vr(vR2 + 2 * j), vr(vC2 + 2 * j))
                    txt += 'v_fma_f32 %s, %s, %s, %s\n' % (vr(tp + 1), vr(tp + 1), vr(vR2 + 2 * j), vr(vC2 + 2 * j))
                txt += 'v_cvt_pk_bf16_f32 %s, %s, %s\n' % (vr(x), vr(tp), vr(tp + 1))
            return txt

    stamp()
    for c in range(min(NS - 1, NC)):
        for x in store_lds(c):
            k(x)
        if c + D < NC:
            for x in load_A(c + D) + load_W(c + D):
                k(x)
    k('s_waitcnt lgkmcnt(0)')
    k('s_barrier')
    stamp()

    def frag_reads(c, stp, fs):
        out = []
        st = c % NS
        ks = stp * KMUL
        for mb in range(TM):
            out.append('ds_read_b128 %s, %s offset:%d' %
                       (vr(vXf[fs] + 4 * mb, 4), vr(vXaS[st]), mb * 32 * PA + ks * 32))
        for w in range(NW):
            for nb in range(TN):
                base = w * szW + ks * 16 * PW + nb * 64
                r = vWf[fs][w] + 4 * nb
                out.append('ds_read_b64_tr_b16 %s, %s offset:%d' % (vr(r, 2), vr(vWaS[st]), base))
                out.append('ds_read_b64_tr_b16 %s, %s offset:%d' % (vr(r + 2, 2), vr(vWaS[st]), base + 4 * PW))
        return out

    def mfmas(fs, first):
        out = []
        for w in range(NW):
            for nb in range(TN):
                for mb in range(TM):
                    a = acc[w][nb][mb]
                    out.append('v_mfma_f32_32x32x16_bf16 %s, %s, %s, %s' %
                               (accr(a, 16), vr(vWf[fs][w] + 4 * nb, 4), vr(vXf[fs] + 4 * mb, 4),
                                '0' if first else accr(a, 16)))
        return out

    for x in frag_reads(0, 0, 0):
        k(x)
    fs = 0
    for c in range(NC):
        cw = c + NS - 1
        wl = []
        if cw < NC:
            wl = store_lds(cw)
            ll = (load_A(cw + D) + load_W(cw + D)) if cw + D < NC else []
            if 'noload' in abl:
                ll = []
            if 'nowrite' in abl:
                wl = []
            wl = wl + ll
        flat = []
        for x in wl:
            flat += [l for l in x.split('\n') if l.strip()]
        def cost(l):
            if l.startswith('ds_write'): return 13
            if l.startswith('buffer_'): return 12
            if l.startswith('s_'): return 1
            return 4
        tot = sum(cost(l) for l in flat)
        nds_after = 0
        pos = 0
        done = 0
        nm_tot = NST * NW * TM * TN
        mi = 0
        for stp in range(NST):
            rl = []
            last = (stp == NST - 1)
            if not last:
                rl = frag_reads(c, stp + 1, fs ^ 1)
            elif c + 1 < NC and NS >= 3:
                rl = frag_reads(c + 1, 0, fs ^ 1)
            ml = mfmas(fs, c == 0 and stp == 0)
            nm = len(ml)
            nr = max(1, nm - 1)
            for i, m in enumerate(ml):
                k(m)
                mi += 1
                out = rl[i * len(rl) // nr:(i + 1) * len(rl) // nr] if i < nr else []
                while pos < len(flat) and done < tot * mi / (0.8 * nm_tot):
                    out.append(flat[pos]); done += cost(flat[pos]); pos += 1
                for line in out:
                    k(line)
                    if line.startswith('ds_write'):
                        nds_after = 0
                    elif line.startswith('ds_'):
                        nds_after += 1
            fs ^= 1
        assert pos == len(flat)
        if cw < NC:
            k('s_waitcnt lgkmcnt(%d)' % min(nds_after, 15))
            k('s_barrier')
        if c + 1 < NC and NS < 3:
            for x in frag_reads(c + 1, 0, fs):
                k(x)

    stamp()
    if ln:
        v2 = RA(vAd, vAd + 4 * APT * NC)
    else:
        v2 = RA(vAd, vXf[0])
    vM = v2.alloc(); vN = v2.alloc()
    k('s_mul_i32 %s, %s, %d' % (sr(sT2), sr(sTm), BM))
    k('s_mul_i32 %s, %s, %d' % (sr(sT3), sr(sTn), BN))
    k('v_and_b32 %s, 31, %s' % (vr(t3), vr(vLane)))
    k('v_lshrrev_b32 %s, 5, %s' % (vr(t4), vr(vLane)))
    k('v_lshlrev_b32 %s, 2, %s' % (vr(t4), vr(t4)))
    if mode == 'tile':
        k('v_lshrrev_b32 %s, %d, %s' % (vr(t1), WN.bit_length() - 1, vr(vWave)))
        k('v_and_b32 %s, %d, %s' % (vr(t2), WN - 1, vr(vWave)))
        k('v_mul_u32_u24 %s, %d, %s' % (vr(t1), BM // WM, vr(t1)))
        k('v_mul_u32_u24 %s, %d, %s' % (vr(t2), BN // WN, vr(t2)))
    else:
        k('v_and_b32 %s, %d, %s' % (vr(t1), TM - 1, vr(vWave)))
        k('v_lshrrev_b32 %s, %d, %s' % (vr(t2), TM.bit_length() - 1, vr(vWave)))
        k('v_lshlrev_b32 %s, 5, %s' % (vr(t1), vr(t1)))
        k('v_lshlrev_b32 %s, 5, %s' % (vr(t2), vr(t2)))
    k('v_add3_u32 %s, %s, %s, %s' % (vr(vM), vr(t1), vr(t3), sr(sT2)))
    k('v_add3_u32 %s, %s, %s, %s' % (vr(vN), vr(t2), vr(t4), sr(sT3)))

    if alg:
        pms = ['quad_perm:[1,0,3,2]', 'quad_perm:[2,3,0,1]'] + (['row_half_mirror'] if LPR == 8 else [])
        vSt = v2.alloc(2, 2)
        k('v_lshrrev_b32 %s, %d, v0' % (vr(t3), LPR.bit_length() - 1))
        k('v_lshlrev_b32 %s, 3, %s' % (vr(t3), vr(t3)))
        k('v_add_u32 %s, %d, %s' % (vr(t3), offSt, vr(t3)))
        for j in range(APT):
            for pm in pms:
                k('v_add_f32_dpp %s, %s, %s %s row_mask:0xf bank_mask:0xf' % (vr(t1), vr(aS + j), vr(aS + j), pm))
                k('v_add_f32_dpp %s, %s, %s %s row_mask:0xf bank_mask:0xf' % (vr(t2), vr(aQ + j), vr(aQ + j), pm))
                k('v_mov_b32 %s, %s' % (vr(aS + j), vr(t1)))
                k('v_mov_b32 %s, %s' % (vr(aQ + j), vr(t2)))
            S_ = aS + j; Q_ = aQ + j
            k('v_mul_f32 %s, 0x%08x, %s' % (vr(S_), f32bits(1.0 / K), vr(S_)))
            k('v_mul_f32 %s, 0x%08x, %s' % (vr(Q_), f32bits(1.0 / K), vr(Q_)))
            k('v_fma_f32 %s, -%s, %s, %s' % (vr(Q_), vr(S_), vr(S_), vr(Q_)))
            k('v_max_f32 %s, 0, %s' % (vr(Q_), vr(Q_)))
            k('v_cvt_pk_bf16_f32 %s, %s, %s' % (vr(t1), vr(S_), vr(Q_)))
            k('v_lshlrev_b32 %s, 16, %s' % (vr(vSt), vr(t1)))
            k('v_and_b32 %s, 0xffff0000, %s' % (vr(Q_), vr(t1)))
            k('v_add_f32 %s, 0x%08x, %s' % (vr(Q_), f32bits(1e-5), vr(Q_)))
            k('v_cvt_pk_bf16_f32 %s, %s, %s' % (vr(t1), vr(Q_), vr(Q_)))
            k('v_lshlrev_b32 %s, 16, %s' % (vr(Q_), vr(t1)))
            k('v_sqrt_f32 %s, %s' % (vr(Q_), vr(Q_)))
            k('v_cvt_pk_bf16_f32 %s, %s, %s' % (vr(t1), vr(Q_), vr(Q_)))
            k('v_lshlrev_b32 %s, 16, %s' % (vr(Q_), vr(t1)))
            k('v_rcp_f32 %s, %s' % (vr(vSt + 1), vr(Q_)))
            k('ds_write_b64 %s, %s offset:%d' % (vr(t3), vr(vSt, 2), j * XROWS * 8))
        k('s_waitcnt lgkmcnt(0)')
        k('s_barrier')
        k('v_lshrrev_b32 %s, %d, %s' % (vr(t1), WN.bit_length() - 1, vr(vWave)))
        k('v_mul_u32_u24 %s, %d, %s' % (vr(t1), BM // WM, vr(t1)))
        k('v_and_b32 %s, 31, %s' % (vr(t2), vr(vLane)))
        k('v_add_lshl_u32 %s, %s, %s, 3' % (vr(t3), vr(t1), vr(t2)))
        k('v_add_u32 %s, %d, %s' % (vr(t3), offSt, vr(t3)))
        vMR = v2.alloc(2 * TM, 2)
        vNM = v2.alloc(2 * TM, 2); vRS = v2.alloc(2 * TM, 2)
        for mb in range(TM):
            k('ds_read_b64 %s, %s offset:%d' % (vr(vMR + 2 * mb, 2), vr(t3), mb * 32 * 8))
        for mb in range(TM):
            k('v_sub_f32 %s, 0, %s' % (vr(vNM + 2 * mb), vr(vMR + 2 * mb)))
            k('v_sub_f32 %s, 0, %s' % (vr(vNM + 2 * mb + 1), vr(vMR + 2 * mb)))
            k('v_mov_b32 %s, %s' % (vr(vRS + 2 * mb), vr(vMR + 2 * mb + 1)))
            k('v_mov_b32 %s, %s' % (vr(vRS + 2 * mb + 1), vr(vMR + 2 * mb + 1)))
        algc = dict(vNM=vNM, vRS=vRS, vCs=vCs)
    else:
        algc = None
    eacc = acc
    eTM, eTN = TM, TN
    ctx = dict(alg=algc, k=k, v=v2, s=s, BM=BM, BN=BN, vLane=vLane, vWave=vWave,
               sTm=sTm, sTn=sTn, sTmp=sTmp, srdO=srdO, srdR=srdR, t=(t1, t2, t3, t4), sT2=sT2, sT3=sT3,
               N=N, name=name, vM=vM, vN=vN, agpr=agpr)
    if hasattr(epi, 'pre'):
        epi.pre(ctx, **(epi_args or {}))
    if mode != 'tile':
        k('s_waitcnt lgkmcnt(0)')
        k('s_barrier')
        vRa = v2.alloc(); vRb = v2.alloc()
        k('v_lshlrev_b32 %s, 4, %s' % (vr(t1), vr(vLane)))
        k('v_lshl_add_u32 %s, %s, 14, %s' % (vr(vRa), vr(vWave), vr(t1)))
        k('v_lshl_add_u32 %s, %s, 12, %s' % (vr(vRb), vr(vWave), vr(t1)))
        for nb in range(TN):
            for mb in range(TM):
                a = acc[0][nb][mb]
                b = nb * TM + mb
                for q in range(4):
                    k('ds_write_b128 %s, %s offset:%d' % (vr(vRa), vr(a + 4 * q, 4), b * 4096 + q * 1024))
        k('s_waitcnt lgkmcnt(0)')
        k('s_barrier')
        vSum = [v.alloc(16, 4) for _ in range(4)]
        for srcw in range(4):
            for q in range(4):
                k('ds_read_b128 %s, %s offset:%d' % (vr(vSum[srcw] + 4 * q, 4), vr(vRb), srcw * 16384 + q * 1024))
        for r in range(0, 16, 2):
            k('v_pk_add_f32 %s, %s, %s' % (vr(vSum[0] + r, 2), vr(vSum[0] + r, 2), vr(vSum[1] + r, 2)))
            k('v_pk_add_f32 %s, %s, %s' % (vr(vSum[2] + r, 2), vr(vSum[2] + r, 2), vr(vSum[3] + r, 2)))
            k('v_pk_add_f32 %s, %s, %s' % (vr(vSum[0] + r, 2), vr(vSum[0] + r, 2), vr(vSum[2] + r, 2)))
        eacc = [[[vSum[0]]]]
        eTM = eTN = 1
    ctx.update(acc=eacc, TM=eTM, TN=eTN)
    epi(ctx, **(epi_args or {}))
    if stamp_wg is not None:
        stamp()
        k('s_waitcnt lgkmcnt(0) vmcnt(0)')
        stamp()
        k('s_cmp_eq_u32 s2, %d' % stamp_wg)
        k('s_cbranch_scc0 L_end_%s' % name)
        make_srd(k, srdO, sTmp, ('dbg', 0), 256)
        k('v_cmp_eq_u32 vcc, 0, v0')
        k('s_and_saveexec_b64 %s, vcc' % sr(sTmp, 2))
        k('s_cbranch_execz L_end_%s' % name)
        for i, r in enumerate(stamps[1:]):
            k('s_sub_u32 %s, %s, %s' % (sr(sT2), sr(r), sr(stamps[0])))
            k('v_mov_b32 %s, %s' % (vr(t1), sr(sT2)))
            k('v_mov_b32 %s, %d' % (vr(t2), 4 * i))
            k('buffer_store_dword %s, %s, %s, 0 offen' % (vr(t1), vr(t2), sr(srdO, 4)))
    k.label('L_end_%s' % name)
    k('s_endpgm')
    if side:
        k.label('L_side_%s' % name)
        k('s_waitcnt lgkmcnt(0)')
        nwg += side(k, nwg, name)
    k.lds = lds_total
    k.nwg = nwg
    return k
```

```python
from asmlib import Kernel
from gemm import RA, vr, sr, f32bits, SLOT, M_ROWS
import epi3
from epi3 import make_srd, preload_kernargs
from gemm3 import ar


def gemm_dw(name, K, N, BM, BN, A, Wt, epi, BK=64, NS=3, PD=6, GM=4, GN=2, epi_args=None, agpr=True,
            stamp_wg=None, abl=''):
    k = Kernel(name)
    NC = K // BK
    NW = len(Wt)
    NTM = M_ROWS // BM
    NTN = N // BN
    nwg = NTM * NTN
    lda = K * 2
    NKS = K // 16
    PA = BK * 2 + 16
    szS = BM * PA
    lds_total = NS * szS
    TM = BM // 32
    TN = BN // 128
    assert TN == 1
    NST = BK // 16
    LPR = BK * 2 // 16
    XROWS = 256 // LPR
    APT = BM // XROWS

    s = RA(4, 100)
    v = RA(1, 256)
    sTmp = s.alloc(2, 2)
    srdA = s.alloc(4, 4)
    srdW = [s.alloc(4, 4) for _ in range(NW)]
    srdO = s.alloc(4, 4)
    srdR = s.alloc(4, 4)
    sTm = s.alloc(); sTn = s.alloc(); sWoff = s.alloc(); sT2 = s.alloc(); sT3 = s.alloc(); sT4 = s.alloc()
    sArow = [s.alloc() for _ in range(APT)]
    stamps = []
    def stamp():
        if stamp_wg is None:
            return
        r = s.alloc(2, 2)
        stamps.append(r)
        k('s_memtime %s' % sr(r, 2))
        k('s_waitcnt lgkmcnt(0)')
    stamp()
    preload_kernargs(k, s)
    k('s_cmp_ge_u32 s2, %d' % nwg)
    k('s_cbranch_scc1 L_end_%s' % name)
    assert GM * GN == 8 and NTM % GM == 0 and NTN % GN == 0
    PM = NTM // GM; PN = NTN // GN
    magic = (1 << 32) // PN + 1
    k('s_lshr_b32 %s, s2, 3' % sr(sT3))
    k('s_and_b32 %s, s2, 7' % sr(sT4))
    k('s_mul_hi_u32 %s, %s, 0x%x' % (sr(sTm), sr(sT3), magic))
    k('s_mul_i32 %s, %s, %d' % (sr(sT2), sr(sTm), PN))
    k('s_sub_u32 %s, %s, %s' % (sr(sTn), sr(sT3), sr(sT2)))
    k('s_and_b32 %s, %s, %d' % (sr(sT2), sr(sT4), GM - 1))
    k('s_mul_i32 %s, %s, %d' % (sr(sT2), sr(sT2), PM))
    k('s_add_u32 %s, %s, %s' % (sr(sTm), sr(sTm), sr(sT2)))
    k('s_lshr_b32 %s, %s, %d' % (sr(sT2), sr(sT4), GM.bit_length() - 1))
    k('s_mul_i32 %s, %s, %d' % (sr(sT2), sr(sT2), PN))
    k('s_add_u32 %s, %s, %s' % (sr(sTn), sr(sTn), sr(sT2)))
    for j in range(APT):
        k('s_mov_b32 %s, %d' % (sr(sArow[j]), j * XROWS * lda))

    vLane = v.alloc(); vWave = v.alloc()
    k('v_and_b32 %s, 63, v0' % vr(vLane))
    k('v_lshrrev_b32 %s, 6, v0' % vr(vWave))
    t1 = v.alloc(); t2 = v.alloc(); t3 = v.alloc(); t4 = v.alloc()
    vAg = v.alloc(); vAst = v.alloc()
    k('v_lshrrev_b32 %s, %d, v0' % (vr(t1), LPR.bit_length() - 1))
    k('v_and_b32 %s, %d, v0' % (vr(t2), LPR - 1))
    k('v_lshlrev_b32 %s, 4, %s' % (vr(t2), vr(t2)))
    k('s_mul_i32 %s, %s, %d' % (sr(sT2), sr(sTm), BM * lda))
    k('v_mul_u32_u24 %s, %d, %s' % (vr(vAg), lda, vr(t1)))
    k('v_add3_u32 %s, %s, %s, %s' % (vr(vAg), vr(vAg), vr(t2), sr(sT2)))
    k('v_mul_u32_u24 %s, %d, %s' % (vr(vAst), PA, vr(t1)))
    k('v_add_u32 %s, %s, %s' % (vr(vAst), vr(vAst), vr(t2)))
    vAd = v.alloc(4 * APT * NC, 4)
    vWg = v.alloc()
    k('s_lshl_b32 %s, %s, 2' % (sr(sT2), sr(sTn)))
    k('v_add_u32 %s, %s, %s' % (vr(t1), sr(sT2), vr(vWave)))
    k('v_mul_u32_u24 %s, %d, %s' % (vr(vWg), NKS * 1024, vr(t1)))
    k('v_lshl_add_u32 %s, %s, 4, %s' % (vr(vWg), vr(vLane), vr(vWg)))
    vWf = [[v.alloc(4, 4) for _ in range(NW)] for _ in range(PD)]

    def load_W(ks):
        out = []
        pre = ''
        if ks % 4 == 0:
            pre = 's_mov_b32 %s, %d\n' % (sr(sWoff), ks * 1024)
        for w in range(NW):
            out.append(pre + 'buffer_load_dwordx4 %s, %s, %s, %s offen offset:%d' %
                       (vr(vWf[ks % PD][w], 4), vr(vWg), sr(srdW[w], 4), sr(sWoff), (ks % 4) * 1024))
            pre = ''
        return out

    vXa = v.alloc()
    k('v_and_b32 %s, 31, %s' % (vr(t3), vr(vLane)))
    k('v_mul_u32_u24 %s, %d, %s' % (vr(vXa), PA, vr(t3)))
    k('v_lshrrev_b32 %s, 5, %s' % (vr(t4), vr(vLane)))
    k('v_lshlrev_b32 %s, 4, %s' % (vr(t4), vr(t4)))
    k('v_add_u32 %s, %s, %s' % (vr(vXa), vr(vXa), vr(t4)))
    def staged(base):
        regs = [base]
        for st in range(1, NS):
            r = v.alloc()
            k('v_add_u32 %s, %d, %s' % (vr(r), st * szS, vr(base)))
            regs.append(r)
        return regs
    vXaS = staged(vXa); vAstS = staged(vAst)
    vXf = [v.alloc(4 * TM, 4) for _ in range(2)]
    k('s_waitcnt lgkmcnt(0)')
    make_srd(k, srdA, sTmp, A, M_ROWS * lda)
    for i in range(NW):
        make_srd(k, srdW[i], sTmp, Wt[i], K * N * 2)
    for c in range(NC):
        for j in range(APT):
            k('buffer_load_dwordx4 %s, %s, %s, %s offen offset:%d' %
              (vr(vAd + 4 * (c * APT + j), 4), vr(vAg), sr(srdA, 4), sr(sArow[j]), c * BK * 2))
    for ks in range(PD):
        for x in load_W(ks):
            k(x)
    an = [0]
    def aalloc():
        r = an[0]; an[0] += 16; return r
    acc = [[[aalloc() for _ in range(TM)] for _ in range(TN)] for _ in range(NW)]

    vS = v.alloc(APT); vQ = v.alloc(APT)
    vOnes = v.alloc()
    vR = v.alloc(APT); vC = v.alloc(APT)
    tp = v.alloc(2, 2)
    k('v_mov_b32 %s, 0x3f803f80' % vr(vOnes))
    for j in range(APT):
        k('v_mov_b32 %s, 0' % vr(vS + j)); k('v_mov_b32 %s, 0' % vr(vQ + j))
    for c in range(NC):
        for j in range(APT):
            for q in range(4):
                x = vAd + 4 * (c * APT + j) + q
                k('v_dot2_f32_bf16 %s, %s, %s, %s' % (vr(vS + j), vr(x), vr(vOnes), vr(vS + j)))
                k('v_dot2_f32_bf16 %s, %s, %s, %s' % (vr(vQ + j), vr(x), vr(x), vr(vQ + j)))
    pms = ['quad_perm:[1,0,3,2]', 'quad_perm:[2,3,0,1]'] + (['row_half_mirror'] if LPR == 8 else [])
    for j in range(APT):
        for pm in pms:
            k('v_add_f32_dpp %s, %s, %s %s row_mask:0xf bank_mask:0xf' % (vr(t1), vr(vS + j), vr(vS + j), pm))
            k('v_add_f32_dpp %s, %s, %s %s row_mask:0xf bank_mask:0xf' % (vr(t2), vr(vQ + j), vr(vQ + j), pm))
            k('v_mov_b32 %s, %s' % (vr(vS + j), vr(t1)))
            k('v_mov_b32 %s, %s' % (vr(vQ + j), vr(t2)))
        S_ = vS + j; Q_ = vQ + j
        k('v_mul_f32 %s, 0x%08x, %s' % (vr(S_), f32bits(1.0 / K), vr(S_)))
        k('v_mul_f32 %s, 0x%08x, %s' % (vr(Q_), f32bits(1.0 / K), vr(Q_)))
        k('v_fma_f32 %s, -%s, %s, %s' % (vr(Q_), vr(S_), vr(S_), vr(Q_)))
        k('v_max_f32 %s, 0, %s' % (vr(Q_), vr(Q_)))
        k('v_cvt_pk_bf16_f32 %s, %s, %s' % (vr(t1), vr(S_), vr(Q_)))
        k('v_lshlrev_b32 %s, 16, %s' % (vr(S_), vr(t1)))
        k('v_and_b32 %s, 0xffff0000, %s' % (vr(Q_), vr(t1)))
        k('v_add_f32 %s, 0x%08x, %s' % (vr(Q_), f32bits(1e-5), vr(Q_)))
        k('v_cvt_pk_bf16_f32 %s, %s, %s' % (vr(t1), vr(Q_), vr(Q_)))
        k('v_lshlrev_b32 %s, 16, %s' % (vr(Q_), vr(t1)))
        k('v_sqrt_f32 %s, %s' % (vr(Q_), vr(Q_)))
        k('v_cvt_pk_bf16_f32 %s, %s, %s' % (vr(t1), vr(Q_), vr(Q_)))
        k('v_lshlrev_b32 %s, 16, %s' % (vr(Q_), vr(t1)))
        k('v_rcp_f32 %s, %s' % (vr(vR + j), vr(Q_)))
        k('v_mul_f32 %s, %s, %s' % (vr(vC + j), vr(S_), vr(vR + j)))
        k('v_sub_f32 %s, 0, %s' % (vr(vC + j), vr(vC + j)))

    def store_lds(c):
        out = []
        st = c % NS
        for j in range(APT):
            src = vAd + 4 * (c * APT + j)
            for q in range(4):
                x = src + q
                out.append('v_lshlrev_b32 %s, 16, %s' % (vr(tp), vr(x)))
                out.append('v_and_b32 %s, 0xffff0000, %s' % (vr(tp + 1), vr(x)))
                out.append('v_fma_f32 %s, %s, %s, %s' % (vr(tp), vr(tp), vr(vR + j), vr(vC + j)))
                out.append('v_fma_f32 %s, %s, %s, %s' % (vr(tp + 1), vr(tp + 1), vr(vR + j), vr(vC + j)))
                out.append('v_cvt_pk_bf16_f32 %s, %s, %s' % (vr(x), vr(tp), vr(tp + 1)))
            out.append('ds_write_b128 %s, %s offset:%d' % (vr(vAstS[st]), vr(src, 4), j * XROWS * PA))
        return out
    stamp()
    for c in range(min(NS - 1, NC)):
        for x in store_lds(c):
            k(x)
    k('s_waitcnt lgkmcnt(0)')
    k('s_barrier')
    stamp()

    def frag_reads(c, stp, fs):
        st = c % NS
        return ['ds_read_b128 %s, %s offset:%d' % (vr(vXf[fs] + 4 * mb, 4), vr(vXaS[st]), mb * 32 * PA + stp * 32)
                for mb in range(TM)]

    for x in frag_reads(0, 0, 0):
        k(x)
    fs = 0
    def cost(l):
        if l.startswith('ds_write'): return 13
        if l.startswith('buffer_'): return 12
        if l.startswith('s_'): return 1
        return 4
    for c in range(NC):
        cw = c + NS - 1
        flat = store_lds(cw) if cw < NC else []
        tot = sum(cost(l) for l in flat)
        nds_after = 0
        pos = 0; done = 0; mi = 0
        nm_tot = NST * NW * TM
        for stp in range(NST):
            ks = c * NST + stp
            rl = []
            if stp < NST - 1:
                rl = frag_reads(c, stp + 1, fs ^ 1)
            elif c + 1 < NC:
                rl = frag_reads(c + 1, 0, fs ^ 1)
            ml = []
            for w in range(NW):
                for mb in range(TM):
                    a = acc[w][0][mb]
                    ml.append('v_mfma_f32_32x32x16_bf16 %s, %s, %s, %s' %
                              (ar(a, 16), vr(vWf[ks % PD][w], 4), vr(vXf[fs] + 4 * mb, 4), '0' if ks == 0 else ar(a, 16)))
            nm = len(ml)
            for i, m in enumerate(ml):
                k(m)
                mi += 1
                out = rl[i * len(rl) // (nm - 2):(i + 1) * len(rl) // (nm - 2)] if i < nm - 2 else []
                if i == TM - 1 and ks + PD < NKS:
                    out += load_W(ks + PD)[0].split('\n')
                if i == nm - 1 and ks + PD < NKS:
                    out += load_W(ks + PD)[1:]
                while pos < len(flat) and done < tot * mi / (0.8 * nm_tot):
                    out.append(flat[pos]); done += cost(flat[pos]); pos += 1
                for line in out:
                    k(line)
                    if line.startswith('ds_write'):
                        nds_after = 0
                    elif line.startswith('ds_'):
                        nds_after += 1
            fs ^= 1
        assert pos == len(flat)
        if cw < NC:
            k('s_waitcnt lgkmcnt(%d)' % min(nds_after, 15))
            k('s_barrier')

    stamp()
    v2 = RA(vAd, vAd + 4 * APT * NC)
    vM = v2.alloc(); vN = v2.alloc()
    k('s_mul_i32 %s, %s, %d' % (sr(sT2), sr(sTm), BM))
    k('s_mul_i32 %s, %s, %d' % (sr(sT3), sr(sTn), BN))
    k('v_and_b32 %s, 31, %s' % (vr(t3), vr(vLane)))
    k('v_lshrrev_b32 %s, 5, %s' % (vr(t4), vr(vLane)))
    k('v_lshlrev_b32 %s, 2, %s' % (vr(t4), vr(t4)))
    k('v_lshlrev_b32 %s, 5, %s' % (vr(t2), vr(vWave)))
    k('v_add_u32 %s, %s, %s' % (vr(vM), sr(sT2), vr(t3)))
    k('v_add3_u32 %s, %s, %s, %s' % (vr(vN), vr(t2), vr(t4), sr(sT3)))
    ctx = dict(alg=None, k=k, v=v2, s=s, BM=BM, BN=BN, vLane=vLane, vWave=vWave,
               sTm=sTm, sTn=sTn, sTmp=sTmp, srdO=srdO, srdR=srdR, t=(t1, t2, t3, t4), sT2=sT2, sT3=sT3,
               N=N, name=name, vM=vM, vN=vN, agpr=True, acc=acc, TM=TM, TN=TN)
    epi(ctx, **(epi_args or {}))
    if stamp_wg is not None:
        stamp()
        k('s_waitcnt lgkmcnt(0) vmcnt(0)')
        stamp()
        k('s_cmp_eq_u32 s2, %d' % stamp_wg)
        k('s_cbranch_scc0 L_end_%s' % name)
        make_srd(k, srdO, sTmp, ('dbg', 0), 256)
        k('v_cmp_eq_u32 vcc, 0, v0')
        k('s_and_saveexec_b64 %s, vcc' % sr(sTmp, 2))
        k('s_cbranch_execz L_end_%s' % name)
        for i, r in enumerate(stamps[1:]):
            k('s_sub_u32 %s, %s, %s' % (sr(sT2), sr(r), sr(stamps[0])))
            k('v_mov_b32 %s, %s' % (vr(t1), sr(sT2)))
            k('v_mov_b32 %s, %d' % (vr(t2), 4 * i))
            k('buffer_store_dword %s, %s, %s, 0 offen' % (vr(t1), vr(t2), sr(srdO, 4)))
    k.label('L_end_%s' % name)
    k('s_endpgm')
    k.lds = lds_total
    k.nwg = nwg
    return k


WS_WT = 0x1500000
WT_STRIDE = 0x190000


def transpose_side(k, base, name, stamp=False):
    PW = 320
    NKS = 28
    if stamp:
        k('s_memtime s[40:41]')
    k('s_sub_u32 s3, s2, %d' % base)
    k('s_cmp_ge_u32 s3, 28')
    k('s_cbranch_scc1 L_send_%s' % name)
    k('s_load_dwordx2 s[4:5], s[0:1], 32')
    k('s_load_dwordx2 s[6:7], s[0:1], 40')
    k('s_load_dwordx2 s[24:25], s[0:1], 72')
    k('s_waitcnt lgkmcnt(0)')
    k('s_mov_b32 s10, s3')
    k('s_mov_b32 s12, 0x%x' % WS_WT)
    k('s_cmp_lt_u32 s3, 14')
    k('s_cbranch_scc1 L_sel_%s' % name)
    k('s_mov_b32 s4, s6'); k('s_mov_b32 s5, s7')
    k('s_sub_u32 s10, s3, 14')
    k('s_mov_b32 s12, 0x%x' % (WS_WT + WT_STRIDE))
    k.label('L_sel_%s' % name)
    k('s_mov_b32 s16, s4'); k('s_and_b32 s17, s5, 0xffff')
    k('s_mov_b32 s18, %d' % (448 * 3584)); k('s_mov_b32 s19, 0x00020000')
    k('s_add_u32 s20, s24, s12')
    k('s_addc_u32 s21, s25, 0')
    k('s_and_b32 s21, s21, 0xffff')
    k('s_mov_b32 s22, %d' % (448 * 3584))
    k('s_mov_b32 s23, 0x00020000')
    k('v_lshrrev_b32 v1, 4, v0')
    k('v_and_b32 v2, 15, v0')
    k('v_lshlrev_b32 v2, 4, v2')
    k('s_lshl_b32 s13, s10, 8')
    k('v_mul_u32_u24 v3, 3584, v1')
    k('v_add3_u32 v3, v3, v2, s13')
    k('v_mul_u32_u24 v4, %d, v1' % PW)
    k('v_add_u32 v4, v4, v2')
    for i in range(28):
        k('s_mov_b32 s14, %d' % (i * 16 * 3584))
        k('buffer_load_dwordx4 v[%d:%d], v3, s[16:19], s14 offen' % (16 + 4 * i, 19 + 4 * i))
    k('v_and_b32 v5, 63, v0')
    k('v_lshrrev_b32 v6, 6, v0')
    k('v_lshrrev_b32 v7, 5, v5')
    k('v_lshlrev_b32 v7, 3, v7')
    k('v_bfe_u32 v8, v5, 2, 2')
    k('v_add_u32 v7, v7, v8')
    k('v_mul_u32_u24 v9, %d, v7' % PW)
    k('v_bfe_u32 v8, v5, 4, 1')
    k('v_lshlrev_b32 v8, 5, v8')
    k('v_and_b32 v10, 3, v5')
    k('v_lshlrev_b32 v10, 3, v10')
    k('v_add3_u32 v9, v9, v8, v10')
    k('v_lshl_add_u32 v9, v6, 6, v9')
    k('s_lshl_b32 s13, s10, 2')
    k('v_add_u32 v11, s13, v6')
    k('v_mul_u32_u24 v11, %d, v11' % (NKS * 1024))
    k('v_lshl_add_u32 v11, v5, 4, v11')
    for c in range(7):
        if stamp:
            k('s_memtime s[%d:%d]' % (42 + 2 * c, 43 + 2 * c))
            k('s_waitcnt lgkmcnt(0)')
        for j in range(4):
            k('ds_write_b128 v4, v[%d:%d] offset:%d' % (16 + 4 * (c * 4 + j), 19 + 4 * (c * 4 + j), j * 16 * PW))
        k('s_waitcnt lgkmcnt(0)')
        k('s_barrier')
        for ks in range(4):
            r = 132 + 4 * ks
            k('ds_read_b64_tr_b16 v[%d:%d], v9 offset:%d' % (r, r + 1, ks * 16 * PW))
            k('ds_read_b64_tr_b16 v[%d:%d], v9 offset:%d' % (r + 2, r + 3, ks * 16 * PW + 4 * PW))
        k('s_mov_b32 s14, %d' % (c * 4096))
        for ks in range(4):
            r = 132 + 4 * ks
            k('buffer_store_dwordx4 v[%d:%d], v11, s[20:23], s14 offen offset:%d' % (r, r + 3, ks * 1024))
        k('s_waitcnt lgkmcnt(0)')
        k('s_barrier')
    if stamp:
        k('s_waitcnt vmcnt(0)')
        k('s_memtime s[56:57]')
        k('s_waitcnt lgkmcnt(0)')
        k('s_cmp_eq_u32 s3, 5')
        k('s_cbranch_scc0 L_send_%s' % name)
        k('s_load_dwordx2 s[4:5], s[0:1], 64')
        k('s_waitcnt lgkmcnt(0)')
        k('s_mov_b32 s16, s4'); k('s_and_b32 s17, s5, 0xffff')
        k('s_mov_b32 s18, 256'); k('s_mov_b32 s19, 0x00020000')
        k('v_cmp_eq_u32 vcc, 0, v0')
        k('s_and_saveexec_b64 s[8:9], vcc')
        k('s_cbranch_execz L_send_%s' % name)
        for i in range(8):
            k('s_sub_u32 s10, s%d, s40' % (42 + 2 * i))
            k('v_mov_b32 v1, s10')
            k('v_mov_b32 v2, %d' % (64 + 4 * i))
            k('buffer_store_dword v1, v2, s[16:19], 0 offen')
    k.label('L_send_%s' % name)
    k('s_endpgm')
    return 28
```

```python
from asmlib import Kernel
from gemm import RA, vr, sr, f32bits, SLOT, M_ROWS
import epi3
from epi3 import make_srd, preload_kernargs


def ar(b, n=1):
    return 'a%d' % b if n == 1 else 'a[%d:%d]' % (b, b + n - 1)


def gemm_kernel(name, K, N, BM, BN, A, Ws, epi, mode='tile', WM=2, WN=2, BK=64, NS=3, D=3, ln=False,
                GM=8, GN=1, epi_args=None, agpr=False, stamp_wg=None, abl='', alg=None, side=None, pf=False):
    k = Kernel(name)
    NC = K // BK
    NW = len(Ws)
    NTM = M_ROWS // BM
    NTN = N // BN
    nwg = NTM * NTN
    lda = K * 2
    ldw = N * 2
    PA = BK * 2 + 16
    PW = BN * 2 + (64 if (BN * 2) % 128 == 0 else 0)
    assert PW % 256 in (64, 192), PW
    szA = BM * PA
    szW = BK * PW
    szS = szA + NW * szW
    lds_total = NS * szS
    if mode == 'tile':
        assert WM * WN == 4
        TM = BM // WM // 32
        TN = BN // WN // 32
        NST = BK // 16
        KMUL = 1
    else:
        TM = BM // 32
        TN = BN // 32
        assert TM * TN == 4
        NST = BK // 64
        KMUL = 4
        lds_total = max(lds_total, 4 * 4 * 4096)
    offSt = lds_total
    if alg:
        lds_total += BM * 8
    LPR = BK * 2 // 16
    XROWS = 256 // LPR
    APT = BM // XROWS
    PPR = BN * 2 // 16
    WPT = BK * PPR // 256
    assert BK * PPR % 256 == 0
    uniform_w = (256 % PPR == 0)
    D = min(D, NC)
    assert D >= NS - 1

    s = RA(4, 100)
    v = RA(1, 256)
    sTmp = s.alloc(2, 2)
    srdA = s.alloc(4, 4)
    srdW = [s.alloc(4, 4) for _ in range(NW)]
    srdO = s.alloc(4, 4)
    srdR = s.alloc(4, 4)
    sTm = s.alloc(); sTn = s.alloc(); sWoff = s.alloc(); sT2 = s.alloc(); sT3 = s.alloc(); sT4 = s.alloc()
    sArow = [s.alloc() for _ in range(APT)]

    stamps = []
    def stamp():
        if stamp_wg is None:
            return
        r = s.alloc(2, 2)
        stamps.append(r)
        k('s_memtime %s' % sr(r, 2))
        k('s_waitcnt lgkmcnt(0)')
    stamp()
    preload_kernargs(k, s)
    k('s_cmp_ge_u32 s2, %d' % nwg)
    k('s_cbranch_scc1 L_%s_%s' % ('side' if side else 'end', name))
    assert GM * GN == 8 and NTM % GM == 0 and NTN % GN == 0
    PM = NTM // GM; PN = NTN // GN
    magic = (1 << 32) // PN + 1
    k('s_lshr_b32 %s, s2, 3' % sr(sT3))
    k('s_and_b32 %s, s2, 7' % sr(sT4))
    if PN == 1:
        k('s_mov_b32 %s, %s' % (sr(sTm), sr(sT3)))
        k('s_mov_b32 %s, 0' % sr(sTn))
    else:
        k('s_mul_hi_u32 %s, %s, 0x%x' % (sr(sTm), sr(sT3), magic))
        k('s_mul_i32 %s, %s, %d' % (sr(sT2), sr(sTm), PN))
        k('s_sub_u32 %s, %s, %s' % (sr(sTn), sr(sT3), sr(sT2)))
    k('s_and_b32 %s, %s, %d' % (sr(sT2), sr(sT4), GM - 1))
    k('s_mul_i32 %s, %s, %d' % (sr(sT2), sr(sT2), PM))
    k('s_add_u32 %s, %s, %s' % (sr(sTm), sr(sTm), sr(sT2)))
    k('s_lshr_b32 %s, %s, %d' % (sr(sT2), sr(sT4), GM.bit_length() - 1))
    k('s_mul_i32 %s, %s, %d' % (sr(sT2), sr(sT2), PN))
    k('s_add_u32 %s, %s, %s' % (sr(sTn), sr(sTn), sr(sT2)))

    for j in range(APT):
        k('s_mov_b32 %s, %d' % (sr(sArow[j]), j * XROWS * lda))

    vLane = v.alloc(); vWave = v.alloc()
    k('v_and_b32 %s, 63, v0' % vr(vLane))
    k('v_lshrrev_b32 %s, 6, v0' % vr(vWave))
    t1 = v.alloc(); t2 = v.alloc(); t3 = v.alloc(); t4 = v.alloc()
    vAg = v.alloc(); vAst = v.alloc()
    sh = LPR.bit_length() - 1
    k('v_lshrrev_b32 %s, %d, v0' % (vr(t1), sh))
    k('v_and_b32 %s, %d, v0' % (vr(t2), LPR - 1))
    k('v_lshlrev_b32 %s, 4, %s' % (vr(t2), vr(t2)))
    k('s_mul_i32 %s, %s, %d' % (sr(sT2), sr(sTm), BM * lda))
    k('v_mul_u32_u24 %s, %d, %s' % (vr(vAg), lda, vr(t1)))
    k('v_add3_u32 %s, %s, %s, %s' % (vr(vAg), vr(vAg), vr(t2), sr(sT2)))
    k('v_mul_u32_u24 %s, %d, %s' % (vr(vAst), PA, vr(t1)))
    k('v_add_u32 %s, %s, %s' % (vr(vAst), vr(vAst), vr(t2)))
    k('s_mul_i32 %s, %s, %d' % (sr(sT2), sr(sTn), BN * 2))
    if uniform_w:
        nadr = 1
        WROWS = 256 // PPR
    else:
        nadr = WPT
    vWg = [v.alloc() for _ in range(nadr)]
    vWst = [v.alloc() for _ in range(nadr)]
    for j in range(nadr):
        if uniform_w:
            k('v_lshrrev_b32 %s, %d, v0' % (vr(t1), PPR.bit_length() - 1))
            k('v_and_b32 %s, %d, v0' % (vr(t2), PPR - 1))
        else:
            k('v_add_u32 %s, %d, v0' % (vr(t3), 256 * j))
            mg = (1 << 20) // PPR + 1
            assert all(((p * mg) >> 20) == p // PPR for p in range(256 * WPT))
            k('v_mul_u32_u24 %s, 0x%x, %s' % (vr(t1), mg, vr(t3)))
            k('v_lshrrev_b32 %s, 20, %s' % (vr(t1), vr(t1)))
            k('v_mul_u32_u24 %s, %d, %s' % (vr(t2), PPR, vr(t1)))
            k('v_sub_u32 %s, %s, %s' % (vr(t2), vr(t3), vr(t2)))
        k('v_lshlrev_b32 %s, 4, %s' % (vr(t2), vr(t2)))
        k('v_mul_u32_u24 %s, %d, %s' % (vr(vWg[j]), ldw, vr(t1)))
        k('v_add3_u32 %s, %s, %s, %s' % (vr(vWg[j]), vr(vWg[j]), vr(t2), sr(sT2)))
        k('v_mul_u32_u24 %s, %d, %s' % (vr(vWst[j]), PW, vr(t1)))
        k('v_add_u32 %s, %s, %s' % (vr(vWst[j]), vr(vWst[j]), vr(t2)))
        k('v_add_u32 %s, %d, %s' % (vr(vWst[j]), szA, vr(vWst[j])))
    vXa = v.alloc(); vWa = v.alloc()
    if mode == 'tile':
        k('v_lshrrev_b32 %s, %d, %s' % (vr(t1), WN.bit_length() - 1, vr(vWave)))
        k('v_and_b32 %s, %d, %s' % (vr(t2), WN - 1, vr(vWave)))
        k('v_mul_u32_u24 %s, %d, %s' % (vr(t1), BM // WM, vr(t1)))
        k('v_and_b32 %s, 31, %s' % (vr(t3), vr(vLane)))
        k('v_add_u32 %s, %s, %s' % (vr(t3), vr(t3), vr(t1)))
    else:
        k('v_and_b32 %s, 31, %s' % (vr(t3), vr(vLane)))
    k('v_mul_u32_u24 %s, %d, %s' % (vr(vXa), PA, vr(t3)))
    k('v_lshrrev_b32 %s, 5, %s' % (vr(t4), vr(vLane)))
    k('v_lshlrev_b32 %s, 4, %s' % (vr(t4), vr(t4)))
    k('v_add_u32 %s, %s, %s' % (vr(vXa), vr(vXa), vr(t4)))
    if mode != 'tile':
        k('v_lshl_add_u32 %s, %s, 5, %s' % (vr(vXa), vr(vWave), vr(vXa)))
    k('v_lshrrev_b32 %s, 5, %s' % (vr(t1), vr(vLane)))
    k('v_lshlrev_b32 %s, 3, %s' % (vr(t1), vr(t1)))
    k('v_bfe_u32 %s, %s, 2, 2' % (vr(t3), vr(vLane)))
    k('v_add_u32 %s, %s, %s' % (vr(t1), vr(t1), vr(t3)))
    if mode != 'tile':
        k('v_lshl_add_u32 %s, %s, 4, %s' % (vr(t1), vr(vWave), vr(t1)))
    k('v_mul_u32_u24 %s, %d, %s' % (vr(vWa), PW, vr(t1)))
    k('v_bfe_u32 %s, %s, 4, 1' % (vr(t3), vr(vLane)))
    k('v_lshlrev_b32 %s, 5, %s' % (vr(t3), vr(t3)))
    k('v_and_b32 %s, 3, %s' % (vr(t4), vr(vLane)))
    k('v_lshlrev_b32 %s, 3, %s' % (vr(t4), vr(t4)))
    k('v_add3_u32 %s, %s, %s, %s' % (vr(vWa), vr(vWa), vr(t3), vr(t4)))
    if mode == 'tile':
        k('v_mul_u32_u24 %s, %d, %s' % (vr(t2), BN // WN * 2, vr(t2)))
        k('v_add_u32 %s, %s, %s' % (vr(vWa), vr(vWa), vr(t2)))
    k('v_add_u32 %s, %d, %s' % (vr(vWa), szA, vr(vWa)))
    def staged(base):
        regs = [base]
        for st in range(1, NS):
            r = v.alloc()
            k('v_add_u32 %s, %d, %s' % (vr(r), st * szS, vr(base)))
            regs.append(r)
        return regs
    vXaS = staged(vXa); vWaS = staged(vWa); vAstS = staged(vAst)
    vWstS = [staged(r) for r in vWst]

    if ln:
        vAd = v.alloc(4 * APT * NC, 4)
    else:
        vAd = v.alloc(4 * APT * D, 4)
    vWd = [v.alloc(4 * WPT * D, 4) for _ in range(NW)]
    vXf = [v.alloc(4 * TM, 4) for _ in range(2)]
    vWf = [[v.alloc(4 * TN, 4) for _ in range(NW)] for _ in range(2)]
    if agpr:
        an = [0]
        def aalloc():
            r = an[0]; an[0] += 16; return r
        acc = [[[aalloc() for _ in range(TM)] for _ in range(TN)] for _ in range(NW)]
        accr = ar
    else:
        acc = [[[v.alloc(16, 4) for _ in range(TM)] for _ in range(TN)] for _ in range(NW)]
        accr = vr

    if alg:
        aS = v.alloc(APT); aQ = v.alloc(APT); aOnes = v.alloc()
        k('v_mov_b32 %s, 0x3f803f80' % vr(aOnes))
        for j in range(APT):
            k('v_mov_b32 %s, 0' % vr(aS + j)); k('v_mov_b32 %s, 0' % vr(aQ + j))
        vCs = [[[v.alloc(4, 4) for _ in range(4)] for _ in range(TN)] for _ in range(NW)]

    def load_A(c):
        out = []
        if ln:
            return out
        for j in range(APT):
            out.append('buffer_load_dwordx4 %s, %s, %s, %s offen offset:%d' %
                       (vr(vAd + 4 * ((c % D) * APT + j), 4), vr(vAg), sr(srdA, 4), sr(sArow[j]), c * BK * 2))
        return out

    def load_W(c):
        out = []
        for j in range(WPT):
            if uniform_w:
                pre = 's_mov_b32 %s, %d\n' % (sr(sWoff), (c * BK + j * WROWS) * ldw)
                adr = vWg[0]
            else:
                pre = 's_mov_b32 %s, %d\n' % (sr(sWoff), c * BK * ldw) if j == 0 else ''
                adr = vWg[j]
            for w in range(NW):
                out.append(pre + 'buffer_load_dwordx4 %s, %s, %s, %s offen' %
                           (vr(vWd[w] + 4 * ((c % D) * WPT + j), 4), vr(adr), sr(srdW[w], 4), sr(sWoff)))
                pre = ''
        return out

    ds_since_write = [0]

    def store_lds(c):
        out = []
        st = c % NS
        for j in range(APT):
            src = vAd + 4 * (((c % D) * APT + j) if not ln else (c * APT + j))
            pre = ''
            if ln:
                pre = normalize(c, j)
            if alg:
                for q in range(4):
                    pre += 'v_dot2_f32_bf16 %s, %s, %s, %s\n' % (vr(aS + j), vr(src + q), vr(aOnes), vr(aS + j))
                    pre += 'v_dot2_f32_bf16 %s, %s, %s, %s\n' % (vr(aQ + j), vr(src + q), vr(src + q), vr(aQ + j))
            out.append(pre + 'ds_write_b128 %s, %s offset:%d' % (vr(vAstS[st]), vr(src, 4), j * XROWS * PA))
        for w in range(NW):
            for j in range(WPT):
                if uniform_w:
                    out.append('ds_write_b128 %s, %s offset:%d' %
                               (vr(vWstS[0][st]), vr(vWd[w] + 4 * ((c % D) * WPT + j), 4), w * szW + j * WROWS * PW))
                else:
                    out.append('ds_write_b128 %s, %s offset:%d' %
                               (vr(vWstS[j][st]), vr(vWd[w] + 4 * ((c % D) * WPT + j), 4), w * szW))
        return out

    k('s_waitcnt lgkmcnt(0)')
    make_srd(k, srdA, sTmp, A, M_ROWS * lda)
    for i in range(NW):
        make_srd(k, srdW[i], sTmp, Ws[i], K * ldw)
    if ln:
        for c in range(NC):
            for j in range(APT):
                k('buffer_load_dwordx4 %s, %s, %s, %s offen offset:%d' %
                  (vr(vAd + 4 * (c * APT + j), 4), vr(vAg), sr(srdA, 4), sr(sArow[j]), c * BK * 2))
    else:
        for c in range(D):
            for x in load_A(c):
                k(x)
    for c in range(D):
        for x in load_W(c):
            k(x)

    if pf:
        LPRW = BN * 2 // 128
        nl = (NC - D) * BK * LPRW
        vPf = v.alloc(); vPd = v.alloc()
        k('s_mul_i32 %s, %s, %d' % (sr(sT2), sr(sTn), BN * 2))
        mg = (1 << 20) // LPRW + 1
        for i in range((nl + 255) // 256):
            assert all(((p * mg) >> 20) == p // LPRW for p in range(256 * (i + 1)))
            k('v_add_u32 %s, %d, v0' % (vr(t3), 256 * i))
            k('v_mul_u32_u24 %s, 0x%x, %s' % (vr(t1), mg, vr(t3)))
            k('v_lshrrev_b32 %s, 20, %s' % (vr(t1), vr(t1)))
            k('v_mul_u32_u24 %s, %d, %s' % (vr(t2), LPRW, vr(t1)))
            k('v_sub_u32 %s, %s, %s' % (vr(t2), vr(t3), vr(t2)))
            k('v_lshlrev_b32 %s, 7, %s' % (vr(t2), vr(t2)))
            k('v_add_u32 %s, %d, %s' % (vr(t1), D * BK, vr(t1)))
            k('v_mul_u32_u24 %s, %d, %s' % (vr(vPf), ldw, vr(t1)))
            k('v_add3_u32 %s, %s, %s, %s' % (vr(vPf), vr(vPf), vr(t2), sr(sT2)))
            for w in range(NW):
                k('buffer_load_dword %s, %s, %s, 0 offen' % (vr(vPd), vr(vPf), sr(srdW[w], 4)))
    if alg:
        assert mode == 'tile'
        srdC = s.alloc(4, 4)
        vCo = v.alloc()
        k('v_and_b32 %s, %d, %s' % (vr(t1), WN - 1, vr(vWave)))
        k('v_mul_u32_u24 %s, %d, %s' % (vr(t1), BN // WN, vr(t1)))
        k('v_lshrrev_b32 %s, 5, %s' % (vr(t2), vr(vLane)))
        k('v_lshlrev_b32 %s, 2, %s' % (vr(t2), vr(t2)))
        k('s_mul_i32 %s, %s, %d' % (sr(sT2), sr(sTn), BN))
        k('v_add3_u32 %s, %s, %s, %s' % (vr(vCo), vr(t1), vr(t2), sr(sT2)))
        k('v_lshlrev_b32 %s, 2, %s' % (vr(vCo), vr(vCo)))
        for w in range(NW):
            make_srd(k, srdC, sTmp, alg[w], N * 4)
            for nb in range(TN):
                for g in range(4):
                    k('buffer_load_dwordx4 %s, %s, %s, 0 offen offset:%d' %
                      (vr(vCs[w][nb][g], 4), vr(vCo), sr(srdC, 4), (nb * 32 + 8 * g) * 4))
    if ln:
        vS = v.alloc(APT); vQ = v.alloc(APT)
        vOnes = v.alloc()
        vR2 = v.alloc(2 * APT, 2); vC2 = v.alloc(2 * APT, 2)
        tp = v.alloc(2, 2)
        k('v_mov_b32 %s, 0x3f803f80' % vr(vOnes))
        for j in range(APT):
            k('v_mov_b32 %s, 0' % vr(vS + j)); k('v_mov_b32 %s, 0' % vr(vQ + j))
        for c in range(NC):
            for j in range(APT):
                for q in range(4):
                    x = vAd + 4 * (c * APT + j) + q
                    k('v_dot2_f32_bf16 %s, %s, %s, %s' % (vr(vS + j), vr(x), vr(vOnes), vr(vS + j)))
                    k('v_dot2_f32_bf16 %s, %s, %s, %s' % (vr(vQ + j), vr(x), vr(x), vr(vQ + j)))
        pms = ['quad_perm:[1,0,3,2]', 'quad_perm:[2,3,0,1]'] + (['row_half_mirror'] if LPR == 8 else [])
        assert LPR in (4, 8)
        for j in range(APT):
            for pm in pms:
                k('v_add_f32_dpp %s, %s, %s %s row_mask:0xf bank_mask:0xf' % (vr(t1), vr(vS + j), vr(vS + j), pm))
                k('v_add_f32_dpp %s, %s, %s %s row_mask:0xf bank_mask:0xf' % (vr(t2), vr(vQ + j), vr(vQ + j), pm))
                k('v_mov_b32 %s, %s' % (vr(vS + j), vr(t1)))
                k('v_mov_b32 %s, %s' % (vr(vQ + j), vr(t2)))
            S_ = vS + j; Q_ = vQ + j
            k('v_mul_f32 %s, 0x%08x, %s' % (vr(S_), f32bits(1.0 / K), vr(S_)))
            k('v_mul_f32 %s, 0x%08x, %s' % (vr(Q_), f32bits(1.0 / K), vr(Q_)))
            k('v_fma_f32 %s, -%s, %s, %s' % (vr(Q_), vr(S_), vr(S_), vr(Q_)))
            k('v_max_f32 %s, 0, %s' % (vr(Q_), vr(Q_)))
            k('v_cvt_pk_bf16_f32 %s, %s, %s' % (vr(t1), vr(S_), vr(Q_)))
            k('v_lshlrev_b32 %s, 16, %s' % (vr(S_), vr(t1)))
            k('v_and_b32 %s, 0xffff0000, %s' % (vr(Q_), vr(t1)))
            k('v_add_f32 %s, 0x%08x, %s' % (vr(Q_), f32bits(1e-5), vr(Q_)))
            k('v_cvt_pk_bf16_f32 %s, %s, %s' % (vr(t1), vr(Q_), vr(Q_)))
            k('v_lshlrev_b32 %s, 16, %s' % (vr(Q_), vr(t1)))
            k('v_sqrt_f32 %s, %s' % (vr(Q_), vr(Q_)))
            k('v_cvt_pk_bf16_f32 %s, %s, %s' % (vr(t1), vr(Q_), vr(Q_)))
            k('v_lshlrev_b32 %s, 16, %s' % (vr(Q_), vr(t1)))
            k('v_rcp_f32 %s, %s' % (vr(Q_), vr(Q_)))
            k('v_mov_b32 %s, %s' % (vr(vR2 + 2 * j), vr(Q_)))
            k('v_mov_b32 %s, %s' % (vr(vR2 + 2 * j + 1), vr(Q_)))
            k('v_mul_f32 %s, %s, %s' % (vr(vC2 + 2 * j), vr(S_), vr(Q_)))
            k('v_sub_f32 %s, 0, %s' % (vr(vC2 + 2 * j), vr(vC2 + 2 * j)))
            k('v_mov_b32 %s, %s' % (vr(vC2 + 2 * j + 1), vr(vC2 + 2 * j)))

        def normalize(c, j):
            txt = ''
            if 'nonorm' in abl:
                return txt
            for q in range(4):
                x = vAd + 4 * (c * APT + j) + q
                txt += 'v_lshlrev_b32 %s, 16, %s\n' % (vr(tp), vr(x))
                txt += 'v_and_b32 %s, 0xffff0000, %s\n' % (vr(tp + 1), vr(x))
                if 'pk' in abl:
                    txt += 'v_pk_fma_f32 %s, %s, %s, %s\n' % (vr(tp, 2), vr(tp, 2), vr(vR2 + 2 * j, 2), vr(vC2 + 2 * j, 2))
                else:
                    txt += 'v_fma_f32 %s, %s, %s, %s\n' % (vr(tp), vr(tp), vr(vR2 + 2 * j), vr(vC2 + 2 * j))
                    txt += 'v_fma_f32 %s, %s, %s, %s\n' % (vr(tp + 1), vr(tp + 1), vr(vR2 + 2 * j), vr(vC2 + 2 * j))
                txt += 'v_cvt_pk_bf16_f32 %s, %s, %s\n' % (vr(x), vr(tp), vr(tp + 1))
            return txt

    stamp()
    for c in range(min(NS - 1, NC)):
        for x in store_lds(c):
            k(x)
        if c + D < NC:
            for x in load_A(c + D) + load_W(c + D):
                k(x)
    k('s_waitcnt lgkmcnt(0)')
    k('s_barrier')
    stamp()

    def frag_reads(c, stp, fs):
        out = []
        st = c % NS
        ks = stp * KMUL
        for mb in range(TM):
            out.append('ds_read_b128 %s, %s offset:%d' %
                       (vr(vXf[fs] + 4 * mb, 4), vr(vXaS[st]), mb * 32 * PA + ks * 32))
        for w in range(NW):
            for nb in range(TN):
                base = w * szW + ks * 16 * PW + nb * 64
                r = vWf[fs][w] + 4 * nb
                out.append('ds_read_b64_tr_b16 %s, %s offset:%d' % (vr(r, 2), vr(vWaS[st]), base))
                out.append('ds_read_b64_tr_b16 %s, %s offset:%d' % (vr(r + 2, 2), vr(vWaS[st]), base + 4 * PW))
        return out

    def mfmas(fs, first):
        out = []
        for w in range(NW):
            for nb in range(TN):
                for mb in range(TM):
                    a = acc[w][nb][mb]
                    out.append('v_mfma_f32_32x32x16_bf16 %s, %s, %s, %s' %
                               (accr(a, 16), vr(vWf[fs][w] + 4 * nb, 4), vr(vXf[fs] + 4 * mb, 4),
                                '0' if first else accr(a, 16)))
        return out

    for x in frag_reads(0, 0, 0):
        k(x)
    fs = 0
    for c in range(NC):
        cw = c + NS - 1
        wl = []
        if cw < NC:
            wl = store_lds(cw)
            ll = (load_A(cw + D) + load_W(cw + D)) if cw + D < NC else []
            if 'noload' in abl:
                ll = []
            if 'nowrite' in abl:
                wl = []
            wl = wl + ll
        flat = []
        for x in wl:
            flat += [l for l in x.split('\n') if l.strip()]
        def cost(l):
            if l.startswith('ds_write'): return 13
            if l.startswith('buffer_'): return 12
            if l.startswith('s_'): return 1
            return 4
        tot = sum(cost(l) for l in flat)
        nds_after = 0
        pos = 0
        done = 0
        nm_tot = NST * NW * TM * TN
        mi = 0
        for stp in range(NST):
            rl = []
            last = (stp == NST - 1)
            if not last:
                rl = frag_reads(c, stp + 1, fs ^ 1)
            elif c + 1 < NC and NS >= 3:
                rl = frag_reads(c + 1, 0, fs ^ 1)
            ml = mfmas(fs, c == 0 and stp == 0)
            nm = len(ml)
            nr = max(1, nm - 1)
            for i, m in enumerate(ml):
                k(m)
                mi += 1
                out = rl[i * len(rl) // nr:(i + 1) * len(rl) // nr] if i < nr else []
                while pos < len(flat) and done < tot * mi / (0.8 * nm_tot):
                    out.append(flat[pos]); done += cost(flat[pos]); pos += 1
                for line in out:
                    k(line)
                    if line.startswith('ds_write'):
                        nds_after = 0
                    elif line.startswith('ds_'):
                        nds_after += 1
            fs ^= 1
        assert pos == len(flat)
        if cw < NC:
            k('s_waitcnt lgkmcnt(%d)' % min(nds_after, 15))
            k('s_barrier')
        if c + 1 < NC and NS < 3:
            for x in frag_reads(c + 1, 0, fs):
                k(x)

    stamp()
    if ln:
        v2 = RA(vAd, vAd + 4 * APT * NC)
    else:
        v2 = RA(vAd, vXf[0])
    vM = v2.alloc(); vN = v2.alloc()
    k('s_mul_i32 %s, %s, %d' % (sr(sT2), sr(sTm), BM))
    k('s_mul_i32 %s, %s, %d' % (sr(sT3), sr(sTn), BN))
    k('v_and_b32 %s, 31, %s' % (vr(t3), vr(vLane)))
    k('v_lshrrev_b32 %s, 5, %s' % (vr(t4), vr(vLane)))
    k('v_lshlrev_b32 %s, 2, %s' % (vr(t4), vr(t4)))
    if mode == 'tile':
        k('v_lshrrev_b32 %s, %d, %s' % (vr(t1), WN.bit_length() - 1, vr(vWave)))
        k('v_and_b32 %s, %d, %s' % (vr(t2), WN - 1, vr(vWave)))
        k('v_mul_u32_u24 %s, %d, %s' % (vr(t1), BM // WM, vr(t1)))
        k('v_mul_u32_u24 %s, %d, %s' % (vr(t2), BN // WN, vr(t2)))
    else:
        k('v_and_b32 %s, %d, %s' % (vr(t1), TM - 1, vr(vWave)))
        k('v_lshrrev_b32 %s, %d, %s' % (vr(t2), TM.bit_length() - 1, vr(vWave)))
        k('v_lshlrev_b32 %s, 5, %s' % (vr(t1), vr(t1)))
        k('v_lshlrev_b32 %s, 5, %s' % (vr(t2), vr(t2)))
    k('v_add3_u32 %s, %s, %s, %s' % (vr(vM), vr(t1), vr(t3), sr(sT2)))
    k('v_add3_u32 %s, %s, %s, %s' % (vr(vN), vr(t2), vr(t4), sr(sT3)))

    if alg:
        pms = ['quad_perm:[1,0,3,2]', 'quad_perm:[2,3,0,1]'] + (['row_half_mirror'] if LPR == 8 else [])
        vSt = v2.alloc(2, 2)
        k('v_lshrrev_b32 %s, %d, v0' % (vr(t3), LPR.bit_length() - 1))
        k('v_lshlrev_b32 %s, 3, %s' % (vr(t3), vr(t3)))
        k('v_add_u32 %s, %d, %s' % (vr(t3), offSt, vr(t3)))
        for j in range(APT):
            for pm in pms:
                k('v_add_f32_dpp %s, %s, %s %s row_mask:0xf bank_mask:0xf' % (vr(t1), vr(aS + j), vr(aS + j), pm))
                k('v_add_f32_dpp %s, %s, %s %s row_mask:0xf bank_mask:0xf' % (vr(t2), vr(aQ + j), vr(aQ + j), pm))
                k('v_mov_b32 %s, %s' % (vr(aS + j), vr(t1)))
                k('v_mov_b32 %s, %s' % (vr(aQ + j), vr(t2)))
            S_ = aS + j; Q_ = aQ + j
            k('v_mul_f32 %s, 0x%08x, %s' % (vr(S_), f32bits(1.0 / K), vr(S_)))
            k('v_mul_f32 %s, 0x%08x, %s' % (vr(Q_), f32bits(1.0 / K), vr(Q_)))
            k('v_fma_f32 %s, -%s, %s, %s' % (vr(Q_), vr(S_), vr(S_), vr(Q_)))
            k('v_max_f32 %s, 0, %s' % (vr(Q_), vr(Q_)))
            k('v_cvt_pk_bf16_f32 %s, %s, %s' % (vr(t1), vr(S_), vr(Q_)))
            k('v_lshlrev_b32 %s, 16, %s' % (vr(vSt), vr(t1)))
            k('v_and_b32 %s, 0xffff0000, %s' % (vr(Q_), vr(t1)))
            k('v_add_f32 %s, 0x%08x, %s' % (vr(Q_), f32bits(1e-5), vr(Q_)))
            k('v_cvt_pk_bf16_f32 %s, %s, %s' % (vr(t1), vr(Q_), vr(Q_)))
            k('v_lshlrev_b32 %s, 16, %s' % (vr(Q_), vr(t1)))
            k('v_sqrt_f32 %s, %s' % (vr(Q_), vr(Q_)))
            k('v_cvt_pk_bf16_f32 %s, %s, %s' % (vr(t1), vr(Q_), vr(Q_)))
            k('v_lshlrev_b32 %s, 16, %s' % (vr(Q_), vr(t1)))
            k('v_rcp_f32 %s, %s' % (vr(vSt + 1), vr(Q_)))
            k('ds_write_b64 %s, %s offset:%d' % (vr(t3), vr(vSt, 2), j * XROWS * 8))
        k('s_waitcnt lgkmcnt(0)')
        k('s_barrier')
        k('v_lshrrev_b32 %s, %d, %s' % (vr(t1), WN.bit_length() - 1, vr(vWave)))
        k('v_mul_u32_u24 %s, %d, %s' % (vr(t1), BM // WM, vr(t1)))
        k('v_and_b32 %s, 31, %s' % (vr(t2), vr(vLane)))
        k('v_add_lshl_u32 %s, %s, %s, 3' % (vr(t3), vr(t1), vr(t2)))
        k('v_add_u32 %s, %d, %s' % (vr(t3), offSt, vr(t3)))
        vMR = v2.alloc(2 * TM, 2)
        vNM = v2.alloc(2 * TM, 2); vRS = v2.alloc(2 * TM, 2)
        for mb in range(TM):
            k('ds_read_b64 %s, %s offset:%d' % (vr(vMR + 2 * mb, 2), vr(t3), mb * 32 * 8))
        for mb in range(TM):
            k('v_sub_f32 %s, 0, %s' % (vr(vNM + 2 * mb), vr(vMR + 2 * mb)))
            k('v_sub_f32 %s, 0, %s' % (vr(vNM + 2 * mb + 1), vr(vMR + 2 * mb)))
            k('v_mov_b32 %s, %s' % (vr(vRS + 2 * mb), vr(vMR + 2 * mb + 1)))
            k('v_mov_b32 %s, %s' % (vr(vRS + 2 * mb + 1), vr(vMR + 2 * mb + 1)))
        algc = dict(vNM=vNM, vRS=vRS, vCs=vCs)
    else:
        algc = None
    eacc = acc
    eTM, eTN = TM, TN
    ctx = dict(alg=algc, k=k, v=v2, s=s, BM=BM, BN=BN, vLane=vLane, vWave=vWave,
               sTm=sTm, sTn=sTn, sTmp=sTmp, srdO=srdO, srdR=srdR, t=(t1, t2, t3, t4), sT2=sT2, sT3=sT3,
               N=N, name=name, vM=vM, vN=vN, agpr=agpr)
    if hasattr(epi, 'pre'):
        epi.pre(ctx, **(epi_args or {}))
    if mode != 'tile':
        k('s_waitcnt lgkmcnt(0)')
        k('s_barrier')
        vRa = v2.alloc(); vRb = v2.alloc()
        k('v_lshlrev_b32 %s, 4, %s' % (vr(t1), vr(vLane)))
        k('v_lshl_add_u32 %s, %s, 14, %s' % (vr(vRa), vr(vWave), vr(t1)))
        k('v_lshl_add_u32 %s, %s, 12, %s' % (vr(vRb), vr(vWave), vr(t1)))
        for nb in range(TN):
            for mb in range(TM):
                a = acc[0][nb][mb]
                b = nb * TM + mb
                for q in range(4):
                    k('ds_write_b128 %s, %s offset:%d' % (vr(vRa), vr(a + 4 * q, 4), b * 4096 + q * 1024))
        k('s_waitcnt lgkmcnt(0)')
        k('s_barrier')
        vSum = [v.alloc(16, 4) for _ in range(4)]
        for srcw in range(4):
            for q in range(4):
                k('ds_read_b128 %s, %s offset:%d' % (vr(vSum[srcw] + 4 * q, 4), vr(vRb), srcw * 16384 + q * 1024))
        for r in range(0, 16, 2):
            k('v_pk_add_f32 %s, %s, %s' % (vr(vSum[0] + r, 2), vr(vSum[0] + r, 2), vr(vSum[1] + r, 2)))
            k('v_pk_add_f32 %s, %s, %s' % (vr(vSum[2] + r, 2), vr(vSum[2] + r, 2), vr(vSum[3] + r, 2)))
            k('v_pk_add_f32 %s, %s, %s' % (vr(vSum[0] + r, 2), vr(vSum[0] + r, 2), vr(vSum[2] + r, 2)))
        eacc = [[[vSum[0]]]]
        eTM = eTN = 1
    ctx.update(acc=eacc, TM=eTM, TN=eTN)
    epi(ctx, **(epi_args or {}))
    if stamp_wg is not None:
        stamp()
        k('s_waitcnt lgkmcnt(0) vmcnt(0)')
        stamp()
        k('s_cmp_eq_u32 s2, %d' % stamp_wg)
        k('s_cbranch_scc0 L_end_%s' % name)
        make_srd(k, srdO, sTmp, ('dbg', 0), 256)
        k('v_cmp_eq_u32 vcc, 0, v0')
        k('s_and_saveexec_b64 %s, vcc' % sr(sTmp, 2))
        k('s_cbranch_execz L_end_%s' % name)
        for i, r in enumerate(stamps[1:]):
            k('s_sub_u32 %s, %s, %s' % (sr(sT2), sr(r), sr(stamps[0])))
            k('v_mov_b32 %s, %s' % (vr(t1), sr(sT2)))
            k('v_mov_b32 %s, %d' % (vr(t2), 4 * i))
            k('buffer_store_dword %s, %s, %s, 0 offen' % (vr(t1), vr(t2), sr(srdO, 4)))
    k.label('L_end_%s' % name)
    k('s_endpgm')
    if side:
        k.label('L_side_%s' % name)
        k('s_waitcnt lgkmcnt(0)')
        nwg += side(k, nwg, name)
    k.lds = lds_total
    k.nwg = nwg
    return k
```

```python
from asmlib import Kernel
from gemm import RA, vr, sr, f32bits, SLOT, M_ROWS
import epi3
from epi3 import make_srd, preload_kernargs
from gemm3 import ar


def gemm_dw(name, K, N, BM, BN, A, Wt, epi, BK=64, NS=3, PD=6, GM=4, GN=2, epi_args=None, agpr=True,
            stamp_wg=None, abl='', side=None):
    k = Kernel(name)
    NC = K // BK
    NW = len(Wt)
    NTM = M_ROWS // BM
    NTN = N // BN
    nwg = NTM * NTN
    lda = K * 2
    NKS = K // 16
    PA = BK * 2 + 16
    szS = BM * PA
    lds_total = NS * szS
    TM = BM // 32
    TN = BN // 128
    assert TN == 1
    NST = BK // 16
    LPR = BK * 2 // 16
    XROWS = 256 // LPR
    APT = BM // XROWS

    s = RA(4, 100)
    v = RA(1, 256)
    sTmp = s.alloc(2, 2)
    srdA = s.alloc(4, 4)
    srdW = [s.alloc(4, 4) for _ in range(NW)]
    srdO = s.alloc(4, 4)
    srdR = s.alloc(4, 4)
    sTm = s.alloc(); sTn = s.alloc(); sWoff = s.alloc(); sT2 = s.alloc(); sT3 = s.alloc(); sT4 = s.alloc()
    sArow = [s.alloc() for _ in range(APT)]
    stamps = []
    def stamp():
        if stamp_wg is None:
            return
        r = s.alloc(2, 2)
        stamps.append(r)
        k('s_memtime %s' % sr(r, 2))
        k('s_waitcnt lgkmcnt(0)')
    stamp()
    preload_kernargs(k, s)
    k('s_cmp_ge_u32 s2, %d' % nwg)
    k('s_cbranch_scc1 L_%s_%s' % ('side' if side else 'end', name))
    assert GM * GN == 8 and NTM % GM == 0 and NTN % GN == 0
    PM = NTM // GM; PN = NTN // GN
    magic = (1 << 32) // PN + 1
    k('s_lshr_b32 %s, s2, 3' % sr(sT3))
    k('s_and_b32 %s, s2, 7' % sr(sT4))
    k('s_mul_hi_u32 %s, %s, 0x%x' % (sr(sTm), sr(sT3), magic))
    k('s_mul_i32 %s, %s, %d' % (sr(sT2), sr(sTm), PN))
    k('s_sub_u32 %s, %s, %s' % (sr(sTn), sr(sT3), sr(sT2)))
    k('s_and_b32 %s, %s, %d' % (sr(sT2), sr(sT4), GM - 1))
    k('s_mul_i32 %s, %s, %d' % (sr(sT2), sr(sT2), PM))
    k('s_add_u32 %s, %s, %s' % (sr(sTm), sr(sTm), sr(sT2)))
    k('s_lshr_b32 %s, %s, %d' % (sr(sT2), sr(sT4), GM.bit_length() - 1))
    k('s_mul_i32 %s, %s, %d' % (sr(sT2), sr(sT2), PN))
    k('s_add_u32 %s, %s, %s' % (sr(sTn), sr(sTn), sr(sT2)))
    for j in range(APT):
        k('s_mov_b32 %s, %d' % (sr(sArow[j]), j * XROWS * lda))

    vLane = v.alloc(); vWave = v.alloc()
    k('v_and_b32 %s, 63, v0' % vr(vLane))
    k('v_lshrrev_b32 %s, 6, v0' % vr(vWave))
    t1 = v.alloc(); t2 = v.alloc(); t3 = v.alloc(); t4 = v.alloc()
    vAg = v.alloc(); vAst = v.alloc()
    k('v_lshrrev_b32 %s, %d, v0' % (vr(t1), LPR.bit_length() - 1))
    k('v_and_b32 %s, %d, v0' % (vr(t2), LPR - 1))
    k('v_lshlrev_b32 %s, 4, %s' % (vr(t2), vr(t2)))
    k('s_mul_i32 %s, %s, %d' % (sr(sT2), sr(sTm), BM * lda))
    k('v_mul_u32_u24 %s, %d, %s' % (vr(vAg), lda, vr(t1)))
    k('v_add3_u32 %s, %s, %s, %s' % (vr(vAg), vr(vAg), vr(t2), sr(sT2)))
    k('v_mul_u32_u24 %s, %d, %s' % (vr(vAst), PA, vr(t1)))
    k('v_add_u32 %s, %s, %s' % (vr(vAst), vr(vAst), vr(t2)))
    vAd = v.alloc(4 * APT * NC, 4)
    vWg = v.alloc()
    k('s_lshl_b32 %s, %s, 2' % (sr(sT2), sr(sTn)))
    k('v_add_u32 %s, %s, %s' % (vr(t1), sr(sT2), vr(vWave)))
    k('v_mul_u32_u24 %s, %d, %s' % (vr(vWg), NKS * 1024, vr(t1)))
    k('v_lshl_add_u32 %s, %s, 4, %s' % (vr(vWg), vr(vLane), vr(vWg)))
    vWf = [[v.alloc(4, 4) for _ in range(NW)] for _ in range(PD)]

    def load_W(ks):
        out = []
        pre = ''
        if ks % 4 == 0:
            pre = 's_mov_b32 %s, %d\n' % (sr(sWoff), ks * 1024)
        for w in range(NW):
            out.append(pre + 'buffer_load_dwordx4 %s, %s, %s, %s offen offset:%d' %
                       (vr(vWf[ks % PD][w], 4), vr(vWg), sr(srdW[w], 4), sr(sWoff), (ks % 4) * 1024))
            pre = ''
        return out

    vXa = v.alloc()
    k('v_and_b32 %s, 31, %s' % (vr(t3), vr(vLane)))
    k('v_mul_u32_u24 %s, %d, %s' % (vr(vXa), PA, vr(t3)))
    k('v_lshrrev_b32 %s, 5, %s' % (vr(t4), vr(vLane)))
    k('v_lshlrev_b32 %s, 4, %s' % (vr(t4), vr(t4)))
    k('v_add_u32 %s, %s, %s' % (vr(vXa), vr(vXa), vr(t4)))
    def staged(base):
        regs = [base]
        for st in range(1, NS):
            r = v.alloc()
            k('v_add_u32 %s, %d, %s' % (vr(r), st * szS, vr(base)))
            regs.append(r)
        return regs
    vXaS = staged(vXa); vAstS = staged(vAst)
    vXf = [v.alloc(4 * TM, 4) for _ in range(2)]
    k('s_waitcnt lgkmcnt(0)')
    make_srd(k, srdA, sTmp, A, M_ROWS * lda)
    for i in range(NW):
        make_srd(k, srdW[i], sTmp, Wt[i], K * N * 2)
    for c in range(NC):
        for j in range(APT):
            k('buffer_load_dwordx4 %s, %s, %s, %s offen offset:%d' %
              (vr(vAd + 4 * (c * APT + j), 4), vr(vAg), sr(srdA, 4), sr(sArow[j]), c * BK * 2))
    for ks in range(PD):
        for x in load_W(ks):
            k(x)
    an = [0]
    def aalloc():
        r = an[0]; an[0] += 16; return r
    acc = [[[aalloc() for _ in range(TM)] for _ in range(TN)] for _ in range(NW)]

    vS = v.alloc(APT); vQ = v.alloc(APT)
    vOnes = v.alloc()
    vR = v.alloc(APT); vC = v.alloc(APT)
    tp = v.alloc(2, 2)
    k('v_mov_b32 %s, 0x3f803f80' % vr(vOnes))
    for j in range(APT):
        k('v_mov_b32 %s, 0' % vr(vS + j)); k('v_mov_b32 %s, 0' % vr(vQ + j))
    for c in range(NC):
        for j in range(APT):
            for q in range(4):
                x = vAd + 4 * (c * APT + j) + q
                k('v_dot2_f32_bf16 %s, %s, %s, %s' % (vr(vS + j), vr(x), vr(vOnes), vr(vS + j)))
                k('v_dot2_f32_bf16 %s, %s, %s, %s' % (vr(vQ + j), vr(x), vr(x), vr(vQ + j)))
    pms = ['quad_perm:[1,0,3,2]', 'quad_perm:[2,3,0,1]'] + (['row_half_mirror'] if LPR == 8 else [])
    for j in range(APT):
        for pm in pms:
            k('v_add_f32_dpp %s, %s, %s %s row_mask:0xf bank_mask:0xf' % (vr(t1), vr(vS + j), vr(vS + j), pm))
            k('v_add_f32_dpp %s, %s, %s %s row_mask:0xf bank_mask:0xf' % (vr(t2), vr(vQ + j), vr(vQ + j), pm))
            k('v_mov_b32 %s, %s' % (vr(vS + j), vr(t1)))
            k('v_mov_b32 %s, %s' % (vr(vQ + j), vr(t2)))
        S_ = vS + j; Q_ = vQ + j
        k('v_mul_f32 %s, 0x%08x, %s' % (vr(S_), f32bits(1.0 / K), vr(S_)))
        k('v_mul_f32 %s, 0x%08x, %s' % (vr(Q_), f32bits(1.0 / K), vr(Q_)))
        k('v_fma_f32 %s, -%s, %s, %s' % (vr(Q_), vr(S_), vr(S_), vr(Q_)))
        k('v_max_f32 %s, 0, %s' % (vr(Q_), vr(Q_)))
        k('v_cvt_pk_bf16_f32 %s, %s, %s' % (vr(t1), vr(S_), vr(Q_)))
        k('v_lshlrev_b32 %s, 16, %s' % (vr(S_), vr(t1)))
        k('v_and_b32 %s, 0xffff0000, %s' % (vr(Q_), vr(t1)))
        k('v_add_f32 %s, 0x%08x, %s' % (vr(Q_), f32bits(1e-5), vr(Q_)))
        k('v_cvt_pk_bf16_f32 %s, %s, %s' % (vr(t1), vr(Q_), vr(Q_)))
        k('v_lshlrev_b32 %s, 16, %s' % (vr(Q_), vr(t1)))
        k('v_sqrt_f32 %s, %s' % (vr(Q_), vr(Q_)))
        k('v_cvt_pk_bf16_f32 %s, %s, %s' % (vr(t1), vr(Q_), vr(Q_)))
        k('v_lshlrev_b32 %s, 16, %s' % (vr(Q_), vr(t1)))
        k('v_rcp_f32 %s, %s' % (vr(vR + j), vr(Q_)))
        k('v_mul_f32 %s, %s, %s' % (vr(vC + j), vr(S_), vr(vR + j)))
        k('v_sub_f32 %s, 0, %s' % (vr(vC + j), vr(vC + j)))

    def store_lds(c):
        out = []
        st = c % NS
        for j in range(APT):
            src = vAd + 4 * (c * APT + j)
            for q in range(4):
                x = src + q
                out.append('v_lshlrev_b32 %s, 16, %s' % (vr(tp), vr(x)))
                out.append('v_and_b32 %s, 0xffff0000, %s' % (vr(tp + 1), vr(x)))
                out.append('v_fma_f32 %s, %s, %s, %s' % (vr(tp), vr(tp), vr(vR + j), vr(vC + j)))
                out.append('v_fma_f32 %s, %s, %s, %s' % (vr(tp + 1), vr(tp + 1), vr(vR + j), vr(vC + j)))
                out.append('v_cvt_pk_bf16_f32 %s, %s, %s' % (vr(x), vr(tp), vr(tp + 1)))
            out.append('ds_write_b128 %s, %s offset:%d' % (vr(vAstS[st]), vr(src, 4), j * XROWS * PA))
        return out
    stamp()
    for c in range(min(NS - 1, NC)):
        for x in store_lds(c):
            k(x)
    k('s_waitcnt lgkmcnt(0)')
    k('s_barrier')
    stamp()

    def frag_reads(c, stp, fs):
        st = c % NS
        return ['ds_read_b128 %s, %s offset:%d' % (vr(vXf[fs] + 4 * mb, 4), vr(vXaS[st]), mb * 32 * PA + stp * 32)
                for mb in range(TM)]

    for x in frag_reads(0, 0, 0):
        k(x)
    fs = 0
    def cost(l):
        if l.startswith('ds_write'): return 13
        if l.startswith('buffer_'): return 12
        if l.startswith('s_'): return 1
        return 4
    for c in range(NC):
        cw = c + NS - 1
        flat = store_lds(cw) if cw < NC else []
        tot = sum(cost(l) for l in flat)
        nds_after = 0
        pos = 0; done = 0; mi = 0
        nm_tot = NST * NW * TM
        for stp in range(NST):
            ks = c * NST + stp
            rl = []
            if stp < NST - 1:
                rl = frag_reads(c, stp + 1, fs ^ 1)
            elif c + 1 < NC:
                rl = frag_reads(c + 1, 0, fs ^ 1)
            ml = []
            for w in range(NW):
                for mb in range(TM):
                    a = acc[w][0][mb]
                    ml.append('v_mfma_f32_32x32x16_bf16 %s, %s, %s, %s' %
                              (ar(a, 16), vr(vWf[ks % PD][w], 4), vr(vXf[fs] + 4 * mb, 4), '0' if ks == 0 else ar(a, 16)))
            nm = len(ml)
            for i, m in enumerate(ml):
                k(m)
                mi += 1
                out = rl[i * len(rl) // (nm - 2):(i + 1) * len(rl) // (nm - 2)] if i < nm - 2 else []
                if i == TM - 1 and ks + PD < NKS:
                    out += load_W(ks + PD)[0].split('\n')
                if i == nm - 1 and ks + PD < NKS:
                    out += load_W(ks + PD)[1:]
                while pos < len(flat) and done < tot * mi / (0.8 * nm_tot):
                    out.append(flat[pos]); done += cost(flat[pos]); pos += 1
                for line in out:
                    k(line)
                    if line.startswith('ds_write'):
                        nds_after = 0
                    elif line.startswith('ds_'):
                        nds_after += 1
            fs ^= 1
        assert pos == len(flat)
        if cw < NC:
            k('s_waitcnt lgkmcnt(%d)' % min(nds_after, 15))
            k('s_barrier')

    stamp()
    v2 = RA(vAd, vAd + 4 * APT * NC)
    vM = v2.alloc(); vN = v2.alloc()
    k('s_mul_i32 %s, %s, %d' % (sr(sT2), sr(sTm), BM))
    k('s_mul_i32 %s, %s, %d' % (sr(sT3), sr(sTn), BN))
    k('v_and_b32 %s, 31, %s' % (vr(t3), vr(vLane)))
    k('v_lshrrev_b32 %s, 5, %s' % (vr(t4), vr(vLane)))
    k('v_lshlrev_b32 %s, 2, %s' % (vr(t4), vr(t4)))
    k('v_lshlrev_b32 %s, 5, %s' % (vr(t2), vr(vWave)))
    k('v_add_u32 %s, %s, %s' % (vr(vM), sr(sT2), vr(t3)))
    k('v_add3_u32 %s, %s, %s, %s' % (vr(vN), vr(t2), vr(t4), sr(sT3)))
    ctx = dict(alg=None, k=k, v=v2, s=s, BM=BM, BN=BN, vLane=vLane, vWave=vWave,
               sTm=sTm, sTn=sTn, sTmp=sTmp, srdO=srdO, srdR=srdR, t=(t1, t2, t3, t4), sT2=sT2, sT3=sT3,
               N=N, name=name, vM=vM, vN=vN, agpr=True, acc=acc, TM=TM, TN=TN)
    epi(ctx, **(epi_args or {}))
    if stamp_wg is not None:
        stamp()
        k('s_waitcnt lgkmcnt(0) vmcnt(0)')
        stamp()
        k('s_cmp_eq_u32 s2, %d' % stamp_wg)
        k('s_cbranch_scc0 L_end_%s' % name)
        make_srd(k, srdO, sTmp, ('dbg', 0), 256)
        k('v_cmp_eq_u32 vcc, 0, v0')
        k('s_and_saveexec_b64 %s, vcc' % sr(sTmp, 2))
        k('s_cbranch_execz L_end_%s' % name)
        for i, r in enumerate(stamps[1:]):
            k('s_sub_u32 %s, %s, %s' % (sr(sT2), sr(r), sr(stamps[0])))
            k('v_mov_b32 %s, %s' % (vr(t1), sr(sT2)))
            k('v_mov_b32 %s, %d' % (vr(t2), 4 * i))
            k('buffer_store_dword %s, %s, %s, 0 offen' % (vr(t1), vr(t2), sr(srdO, 4)))
    k.label('L_end_%s' % name)
    k('s_endpgm')
    if side:
        k.label('L_side_%s' % name)
        k('s_waitcnt lgkmcnt(0)')
        nwg += side(k, nwg, name)
    k.lds = lds_total
    k.nwg = nwg
    return k


def touch_side(slot, nbytes, nw=32):
    def f(k, base, name):
        per = (nbytes + nw - 1) // nw
        per = (per + 4095) // 4096 * 4096
        k('s_sub_u32 s3, s2, %d' % base)
        k('s_cmp_ge_u32 s3, %d' % nw)
        k('s_cbranch_scc1 L_send_%s' % name)
        k('s_load_dwordx2 s[4:5], s[0:1], %d' % SLOT[slot])
        k('s_waitcnt lgkmcnt(0)')
        k('s_mov_b32 s16, s4'); k('s_and_b32 s17, s5, 0xffff')
        k('s_mov_b32 s18, %d' % nbytes); k('s_mov_b32 s19, 0x00020000')
        k('s_mul_i32 s13, s3, %d' % per)
        k('v_lshlrev_b32 v1, 4, v0')
        k('v_add_u32 v1, s13, v1')
        for i in range(per // 4096):
            k('s_mov_b32 s14, %d' % (i * 4096))
            k('buffer_load_dwordx4 v[%d:%d], v1, s[16:19], s14 offen' % (4 + 4 * i, 7 + 4 * i))
        k('s_waitcnt vmcnt(0)')
        k.label('L_send_%s' % name)
        k('s_endpgm')
        return nw
    return f


WS_WT = 0x1500000
WT_STRIDE = 0x190000


def transpose_side(k, base, name, stamp=False):
    PW = 320
    NKS = 28
    if stamp:
        k('s_memtime s[40:41]')
    k('s_sub_u32 s3, s2, %d' % base)
    k('s_cmp_ge_u32 s3, 28')
    k('s_cbranch_scc1 L_send_%s' % name)
    k('s_load_dwordx2 s[4:5], s[0:1], 32')
    k('s_load_dwordx2 s[6:7], s[0:1], 40')
    k('s_load_dwordx2 s[24:25], s[0:1], 72')
    k('s_waitcnt lgkmcnt(0)')
    k('s_mov_b32 s10, s3')
    k('s_mov_b32 s12, 0x%x' % WS_WT)
    k('s_cmp_lt_u32 s3, 14')
    k('s_cbranch_scc1 L_sel_%s' % name)
    k('s_mov_b32 s4, s6'); k('s_mov_b32 s5, s7')
    k('s_sub_u32 s10, s3, 14')
    k('s_mov_b32 s12, 0x%x' % (WS_WT + WT_STRIDE))
    k.label('L_sel_%s' % name)
    k('s_mov_b32 s16, s4'); k('s_and_b32 s17, s5, 0xffff')
    k('s_mov_b32 s18, %d' % (448 * 3584)); k('s_mov_b32 s19, 0x00020000')
    k('s_add_u32 s20, s24, s12')
    k('s_addc_u32 s21, s25, 0')
    k('s_and_b32 s21, s21, 0xffff')
    k('s_mov_b32 s22, %d' % (448 * 3584))
    k('s_mov_b32 s23, 0x00020000')
    k('v_lshrrev_b32 v1, 4, v0')
    k('v_and_b32 v2, 15, v0')
    k('v_lshlrev_b32 v2, 4, v2')
    k('s_lshl_b32 s13, s10, 8')
    k('v_mul_u32_u24 v3, 3584, v1')
    k('v_add3_u32 v3, v3, v2, s13')
    k('v_mul_u32_u24 v4, %d, v1' % PW)
    k('v_add_u32 v4, v4, v2')
    for i in range(28):
        k('s_mov_b32 s14, %d' % (i * 16 * 3584))
        k('buffer_load_dwordx4 v[%d:%d], v3, s[16:19], s14 offen' % (16 + 4 * i, 19 + 4 * i))
    k('v_and_b32 v5, 63, v0')
    k('v_lshrrev_b32 v6, 6, v0')
    k('v_lshrrev_b32 v7, 5, v5')
    k('v_lshlrev_b32 v7, 3, v7')
    k('v_bfe_u32 v8, v5, 2, 2')
    k('v_add_u32 v7, v7, v8')
    k('v_mul_u32_u24 v9, %d, v7' % PW)
    k('v_bfe_u32 v8, v5, 4, 1')
    k('v_lshlrev_b32 v8, 5, v8')
    k('v_and_b32 v10, 3, v5')
    k('v_lshlrev_b32 v10, 3, v10')
    k('v_add3_u32 v9, v9, v8, v10')
    k('v_lshl_add_u32 v9, v6, 6, v9')
    k('s_lshl_b32 s13, s10, 2')
    k('v_add_u32 v11, s13, v6')
    k('v_mul_u32_u24 v11, %d, v11' % (NKS * 1024))
    k('v_lshl_add_u32 v11, v5, 4, v11')
    for c in range(7):
        if stamp:
            k('s_memtime s[%d:%d]' % (42 + 2 * c, 43 + 2 * c))
            k('s_waitcnt lgkmcnt(0)')
        for j in range(4):
            k('ds_write_b128 v4, v[%d:%d] offset:%d' % (16 + 4 * (c * 4 + j), 19 + 4 * (c * 4 + j), j * 16 * PW))
        k('s_waitcnt lgkmcnt(0)')
        k('s_barrier')
        for ks in range(4):
            r = 132 + 4 * ks
            k('ds_read_b64_tr_b16 v[%d:%d], v9 offset:%d' % (r, r + 1, ks * 16 * PW))
            k('ds_read_b64_tr_b16 v[%d:%d], v9 offset:%d' % (r + 2, r + 3, ks * 16 * PW + 4 * PW))
        k('s_mov_b32 s14, %d' % (c * 4096))
        for ks in range(4):
            r = 132 + 4 * ks
            k('buffer_store_dwordx4 v[%d:%d], v11, s[20:23], s14 offen offset:%d' % (r, r + 3, ks * 1024))
        k('s_waitcnt lgkmcnt(0)')
        k('s_barrier')
    if stamp:
        k('s_waitcnt vmcnt(0)')
        k('s_memtime s[56:57]')
        k('s_waitcnt lgkmcnt(0)')
        k('s_cmp_eq_u32 s3, 5')
        k('s_cbranch_scc0 L_send_%s' % name)
        k('s_load_dwordx2 s[4:5], s[0:1], 64')
        k('s_waitcnt lgkmcnt(0)')
        k('s_mov_b32 s16, s4'); k('s_and_b32 s17, s5, 0xffff')
        k('s_mov_b32 s18, 256'); k('s_mov_b32 s19, 0x00020000')
        k('v_cmp_eq_u32 vcc, 0, v0')
        k('s_and_saveexec_b64 s[8:9], vcc')
        k('s_cbranch_execz L_send_%s' % name)
        for i in range(8):
            k('s_sub_u32 s10, s%d, s40' % (42 + 2 * i))
            k('v_mov_b32 v1, s10')
            k('v_mov_b32 v2, %d' % (64 + 4 * i))
            k('buffer_store_dword v1, v2, s[16:19], 0 offen')
    k.label('L_send_%s' % name)
    k('s_endpgm')
    return 28
```
